```python
import torch

def _softmax(x, axis=-1):
    return torch.softmax(x, dim=axis)
def _gelu(x):
    return torch.nn.functional.gelu(x, approximate="tanh")
def _silu(x):
    return torch.nn.functional.silu(x)
def _sigmoid(x):
    return torch.sigmoid(x)
def _layernorm(x, axis=-1, eps=1e-5):
    m = x.mean(dim=axis, keepdim=True)
    v = x.var(dim=axis, keepdim=True, unbiased=False)
    return (x - m) / torch.sqrt(v + eps)
def _scatter_add(tgt, idx, src, axis=0):
    return tgt.clone().index_add_(axis, idx, src)
def _segment_sum(src, seg, n):
    out = torch.zeros((n,) + src.shape[1:], dtype=src.dtype)
    return out.index_add_(0, seg, src)
def _pad(x, pw):
    flat = tuple(v for pair in reversed(pw) for v in pair)
    return torch.nn.functional.pad(x, flat)

kernel_name = 'standalone__dense_activation_relu__prompt'

def setup_inputs():

    _w = (lambda a: (lambda t: t.to(torch.bfloat16) if t.is_floating_point() else t)(torch.as_tensor(a)))
    B, S, D, Dff = 1, 2048, 448, 1792
    return {
        "x": _w((lambda *s: torch.randn(*s, dtype=torch.bfloat16) * 0.05)(B, S, D)),
        "w1": _w((lambda *s: torch.randn(*s, dtype=torch.bfloat16) * 0.05)(D, Dff)),
        "w2": _w((lambda *s: torch.randn(*s, dtype=torch.bfloat16) * 0.05)(Dff, D)),
    }

def reference(x, w1, w2):
    h = torch.einsum("bsd,df->bsf", x, w1)
    zero = torch.zeros_like(h)
    h = torch.maximum(h, zero)
    return torch.einsum("bsf,fd->bsd", h, w2)
```

```python
import sys, argparse

KNAME = "standalone__dense_activation_relu__prompt_kernel"
HEADER_COMMENTS = open("standalone__dense_activation_relu__prompt.s.ref").read().split("; Override")[0]

class G:
    def __init__(self):
        self.L = []
        self.vm = []
        self.lg = []
        self.nst = 0
    def A(self, s):
        self.L.append("    " + s)
    def label(self, s):
        self.L.append(s + ":")
    def C(self, s):
        self.L.append("    ; " + s)
    def vmem(self, tag, s):
        self.A(s); self.vm.append(tag)
    def ds(self, tag, s):
        self.A(s); self.lg.append(tag)
    def _n_after(self, lst, tag):
        idx = max(i for i, t in enumerate(lst) if t == tag)
        return len(lst) - 1 - idx, idx
    def wait_vm(self, tag):
        if tag not in self.vm: return
        n, idx = self._n_after(self.vm, tag)
        assert n <= 63, n
        self.A(f"s_waitcnt vmcnt({n})")
        self.vm = self.vm[idx+1:]
    def wait_lg(self, tag):
        if tag not in self.lg: return
        n, idx = self._n_after(self.lg, tag)
        if n > 15: n = 15; idx = len(self.lg) - 1 - 15
        self.A(f"s_waitcnt lgkmcnt({n})")
        self.lg = self.lg[idx+1:]
    def wait_all(self):
        self.A("s_waitcnt vmcnt(0) lgkmcnt(0)"); self.vm = []; self.lg = []

def gen(D=2, stamps=False, rot1="none", rot2="none", HD=8):
    g = G(); A = g.A
    NWG = 224
    FLAG_OFF = 0x800000
    STAMP_OFF = 0x8000000
    def stamp():
        if stamps:
            A(f"s_memtime s[{64+2*g.nst}:{65+2*g.nst}]")
            g.nst += 1
            assert g.nst <= 15
    if stamps:
        A("s_memrealtime s[62:63]")
    stamp()
    A(f"s_cmp_ge_u32 s2, {NWG}")
    A("s_cbranch_scc1 L_end")
    A("s_load_dwordx8 s[4:11], s[0:1], 0")
    A("s_load_dwordx4 s[12:15], s[0:1], 32")
    A("s_memrealtime s[60:61]")
    A("s_and_b32 s36, s2, 7")
    A("s_lshr_b32 s37, s2, 3")
    A("s_mul_i32 s38, s37, 37")
    A("s_lshr_b32 s38, s38, 8")
    A("s_mul_i32 s39, s38, 7")
    A("s_sub_u32 s39, s37, s39")
    A("s_lshr_b32 s40, s36, 1")
    A("s_lshl_b32 s40, s40, 2")
    A("s_add_u32 s40, s40, s38")
    A("s_and_b32 s41, s36, 1")
    A("s_mul_i32 s41, s41, 7")
    A("s_add_u32 s41, s41, s39")
    A("s_lshl_b32 s42, s36, 2")
    A("s_add_u32 s42, s42, s38")
    A("v_and_b32 v1, 63, v0")
    A("v_lshrrev_b32 v2, 6, v0")
    A("v_lshrrev_b32 v3, 3, v1")
    A("v_readfirstlane_b32 s43, v2")
    A("v_and_b32 v4, 7, v1")
    A("v_lshl_add_u32 v5, v2, 5, v3")
    A("v_mul_u32_u24 v7, 896, v5")
    A("v_lshrrev_b32 v6, 1, v3")
    A("v_xor_b32 v8, v6, v4")
    A("v_lshl_add_u32 v10, v8, 4, v7")
    A("v_xor_b32 v8, 4, v8")
    A("v_lshl_add_u32 v11, v8, 4, v7")
    A(f"v_add_u32 v11, {7168-1024}, v11")
    A(f"v_add_u32 v12, {2*(7168-1024)}, v10")
    A(f"v_add_u32 v13, {2*(7168-1024)}, v11")
    A("v_mul_u32_u24 v5, 448, v2")
    A("v_add_u32 v5, v5, v3")
    A("v_mul_u32_u24 v7, 896, v5")
    A("v_bfe_u32 v6, v1, 4, 1")
    A("v_lshlrev_b32 v6, 2, v6")
    A("v_xor_b32 v8, v6, v4")
    A("v_lshl_add_u32 v18, v8, 4, v7")
    for i in range(1, 4):
        A(f"v_add_u32 v{18+i}, {i*(7168-1024)}, v18")
    A("v_lshrrev_b32 v3, 4, v1")
    A("v_and_b32 v4, 15, v1")
    A("v_lshl_add_u32 v5, v2, 4, v3")
    A("v_mul_u32_u24 v7, 3584, v5")
    A("v_lshlrev_b32 v6, 2, v3")
    A("v_xor_b32 v8, v6, v4")
    A("v_lshl_add_u32 v14, v8, 4, v7")
    for i in range(1, 4):
        A(f"v_add_u32 v{14+i}, {i*(14336-1024)}, v14")
    A("s_waitcnt lgkmcnt(0)")
    stamp()
    A("s_mul_i32 s44, s40, 114688")
    A("s_add_u32 s16, s4, s44")
    A("s_addc_u32 s17, s5, 0")
    A("s_mov_b32 s18, 114688")
    A("s_mov_b32 s19, 0x20000")
    A("s_lshl_b32 s44, s41, 8")
    A("s_add_u32 s20, s6, s44")
    A("s_addc_u32 s21, s7, 0")
    A("s_sub_u32 s22, 1605632, s44")
    A("s_mov_b32 s23, 0x20000")
    A("s_lshl_b32 s45, s43, 12")
    if rot1 == "none":
        A("s_mov_b32 s46, 0")
    elif rot1 == "g2":
        A("s_add_u32 s46, s38, s39")
        A("s_and_b32 s46, s46, 1")
        A("s_lshl_b32 s46, s46, 2")
    elif rot1 == "full":
        A("s_lshl_b32 s46, s38, 1")
        A("s_add_u32 s46, s46, s39")
        A("s_cmp_ge_u32 s46, 7")
        A("s_cselect_b32 s44, 7, 0")
        A("s_sub_u32 s46, s46, s44")
    elif rot1 == "g3":
        A("s_add_u32 s46, s38, s39")
        A("s_mul_i32 s44, s46, 86")
        A("s_lshr_b32 s44, s44, 8")
        A("s_mul_i32 s44, s44, 3")
        A("s_sub_u32 s46, s46, s44")
        A("s_mul_i32 s46, s46, 5")
        A("s_lshr_b32 s46, s46, 1")

    def inc7(reg):
        A(f"s_add_u32 s{reg}, s{reg}, 1")
        A(f"s_cmp_eq_u32 s{reg}, 7")
        A(f"s_cselect_b32 s{reg}, 0, s{reg}")

    def item_ops(n):
        ops = []
        if n < 7:
            slot = n % 5
            tag = ("p1", n)
            pre = ["s_lshl_b32 s49, s46, 7", f"s_mul_i32 s50, s46, {64*3584}", f"s_add_u32 m0, s45, {slot*32768}", "s_nop 0"]
            for i in range(4):
                off = f" offset:{1024*i}" if i else ""
                ops.append((pre if i == 0 else [], tag, f"buffer_load_dwordx4 v{10+i}, s[16:19], s49 offen{off} lds"))
            for i in range(4):
                off = f" offset:{1024*i}" if i else ""
                pre = [f"s_add_u32 m0, s45, {slot*32768+16384}", "s_add_u32 s46, s46, 1", "s_cmp_eq_u32 s46, 7", "s_cselect_b32 s46, 0, s46"]
                ops.append((pre if i == 0 else [], tag, f"buffer_load_dwordx4 v{14+i}, s[20:23], s50 offen{off} lds"))
        else:
            u = n - 7
            slot = [2, 3, 4, 0, 1, 2, 3][u]
            tag = ("w2", u)
            pre = [f"s_mul_i32 s49, s47, {64*896}", f"s_add_u32 m0, s51, {slot*32768}", f"s_add_u32 s50, s49, {32*896}"]
            for i in range(4):
                off = f" offset:{1024*i}" if i else ""
                ops.append((pre if i == 0 else [], tag, f"buffer_load_dwordx4 v{18+i}, s[24:27], s49 offen{off} lds"))
            for i in range(4):
                off = f" offset:{1024*i}" if i else ""
                pre = [f"s_add_u32 m0, s51, {slot*32768+4096}", "s_add_u32 s47, s47, 1", "s_cmp_eq_u32 s47, 7", "s_cselect_b32 s47, 0, s47"]
                ops.append((pre if i == 0 else [], tag, f"buffer_load_dwordx4 v{18+i}, s[24:27], s50 offen{off} lds"))
        return ops
    def emit_op(op):
        pre, tag, ins = op
        for p in pre: A(p)
        g.vmem(tag, ins)
    def emit_item(n):
        for op in item_ops(n): emit_op(op)

    emit_item(0)
    A("s_or_b32 s44, s2, s43")
    A("s_cmp_lg_u32 s44, 0")
    A("s_cbranch_scc1 L_noepoch")
    A("s_or_b32 s60, s60, 1")
    A("v_mov_b32 v2, s60")
    A("v_mov_b32 v3, s61")
    A("v_mov_b32 v4, 0")
    A("s_mov_b64 exec, 1")
    A("global_store_dwordx2 v4, v[2:3], s[12:13] sc0 sc1")
    A("s_mov_b64 exec, -1")
    A("s_waitcnt vmcnt(0)")
    g.label("L_noepoch")
    for n in range(1, D): emit_item(n)
    A("s_lshl_b32 s44, s39, 7")
    A("s_add_u32 s24, s8, s44")
    A("s_addc_u32 s25, s9, 0")
    A("s_sub_u32 s26, 1605632, s44")
    A("s_mov_b32 s27, 0x20000")
    A("s_lshl_b32 s51, s43, 13")
    if rot2 == "none":
        A("s_mov_b32 s47, 0")
    elif rot2 == "g2":
        A("s_add_u32 s47, s38, s39")
        A("s_and_b32 s47, s47, 1")
        A("s_lshl_b32 s47, s47, 2")
    elif rot2 == "full":
        A("s_lshl_b32 s47, s38, 1")
        A("s_add_u32 s47, s47, s39")
        A("s_cmp_ge_u32 s47, 7")
        A("s_cselect_b32 s44, 7, 0")
        A("s_sub_u32 s47, s47, s44")
    A("s_mov_b32 s48, s47")
    A("s_mov_b32 s28, s14")
    A("s_mov_b32 s29, s15")
    A(f"s_mov_b32 s30, {FLAG_OFF + 16384}")
    A("s_mov_b32 s31, 0x20000")
    A("s_mov_b32 s32, s10")
    A("s_mov_b32 s33, s11")
    A("s_mov_b32 s34, 1835008")
    A("s_mov_b32 s35, 0x20000")
    A("v_and_b32 v2, 31, v1")
    A("v_lshrrev_b32 v3, 5, v1")
    A("v_bfe_u32 v4, v1, 1, 3")
    A("v_xor_b32 v4, v4, v3")
    A("v_lshlrev_b32 v4, 4, v4")
    A("v_lshl_add_u32 v4, v2, 7, v4")
    A("s_lshr_b32 s52, s43, 1")
    A("s_and_b32 s53, s43, 1")
    A("s_lshl_b32 s44, s52, 13")
    A("v_add_u32 v22, s44, v4")
    for s in range(1, 4):
        A(f"v_xor_b32 v{22+s}, {s<<5}, v22")
    A("v_bfe_u32 v5, v1, 2, 2")
    A("v_lshl_add_u32 v6, v3, 3, v5")
    A("v_lshlrev_b32 v6, 8, v6")
    A("v_and_b32 v7, 3, v1")
    A("v_lshlrev_b32 v7, 3, v7")
    A("v_bfe_u32 v8, v1, 4, 1")
    A("v_lshl_add_u32 v7, v8, 5, v7")
    A("s_lshl_b32 s44, s53, 1")
    A("v_xor_b32 v9, s44, v5")
    A("v_lshl_add_u32 v9, v9, 6, v7")
    A("v_add3_u32 v26, v9, v6, 0")
    A("v_add_u32 v26, 16384, v26")
    A("v_xor_b32 v27, 64, v26")
    A("v_lshl_add_u32 v6, v3, 2, v5")
    A("v_lshlrev_b32 v6, 7, v6")
    A("v_lshrrev_b32 v9, 1, v5")
    A("v_lshl_add_u32 v9, v9, 6, v7")
    A("v_add3_u32 v28, v9, v6, s51")
    A("v_xor_b32 v29, 64, v28")
    A("v_add_u32 v40, 0x10000, v28")
    A("v_add_u32 v41, 0x10000, v29")
    A("v_add_u32 v42, 0x20000, v28")
    A("v_add_u32 v43, 0x20000, v29")
    A("v_lshlrev_b32 v30, 4, v1")
    A("v_mov_b32 v36, 0")
    A("s_lshl_b32 s44, s40, 1")
    A("s_add_u32 s44, s44, s52")
    A("s_mul_i32 s54, s44, 112")
    A("s_lshl_b32 s55, s41, 1")
    A("s_add_u32 s55, s55, s53")
    A("s_lshl_b32 s56, s55, 2")
    A("s_add_u32 s54, s54, s56")
    A("s_lshl_b32 s54, s54, 11")
    A("s_mul_i32 s56, s55, 37")
    A("s_lshr_b32 s56, s56, 8")
    A("s_mul_i32 s57, s56, 7")
    A("s_sub_u32 s57, s55, s57")
    A("s_lshl_b32 s44, s44, 2")
    A("s_add_u32 s44, s44, s56")
    A("s_lshl_b32 s44, s44, 7")
    A("s_lshl_b32 s57, s57, 3")
    A("s_add_u32 s55, s44, s57")
    A(f"s_add_u32 s55, s55, {FLAG_OFF}")
    A("s_mul_i32 s56, s42, 112")
    A("s_mul_i32 s57, s43, 28")
    A("s_add_u32 s56, s56, s57")
    A("s_lshl_b32 s56, s56, 11")
    A("s_lshl_b32 s57, s42, 2")
    A("s_add_u32 s57, s57, s43")
    A("s_lshl_b32 s57, s57, 7")
    A(f"s_add_u32 s57, s57, {FLAG_OFF}")
    A("v_min_u32 v31, 6, v1")
    A("v_lshlrev_b32 v31, 3, v31")

    ACC = 64
    def acc(i, j):
        b = ACC + (i*2+j)*16
        return f"v[{b}:{b+15}]"
    FB = 128
    NB = 3
    def xf(buf, j): b = FB + buf*16 + j*4; return b
    def wf(buf, i): b = FB + buf*16 + 8 + i*4; return b

    cur_base = 0
    next_item = D
    for t in range(7):
        slot = t % 5
        want = (slot // 2) * 65536
        g.wait_vm(("p1", t))
        A("s_barrier")
        if t in (0, 3, 6): stamp()
        if want != cur_base:
            d = (want - cur_base) & 0xffffffff
            for r in range(22, 28):
                A(f"v_add_u32 v{r}, 0x{d:x}, v{r}")
            cur_base = want
        so = slot*32768 - want
        def reads(s):
            buf = s % NB
            for j in range(2):
                b = xf(buf, j)
                g.ds(("f", t, s), f"ds_read_b128 v[{b}:{b+3}], v{22+s} offset:{so + j*4096}")
            for i in range(2):
                b = wf(buf, i)
                for jj in range(2):
                    g.ds(("f", t, s), f"ds_read_b64_tr_b16 v[{b+2*jj}:{b+2*jj+1}], v{26+i} offset:{so + s*4096 + jj*1024}")
        ops = []
        if next_item <= 10 and next_item - 5 <= t - 1:
            ops = item_ops(next_item); next_item += 1
        if t == 3:
            g.vmem("epoch", "global_load_dwordx2 v[32:33], v36, s[12:13] sc0 sc1")
        reads(0); reads(1)
        for s in range(4):
            if s + 2 < 4: reads(s + 2)
            g.wait_lg(("f", t, s))
            buf = s % NB
            k = 0
            for i in range(2):
                for j in range(2):
                    c = "0" if (t == 0 and s == 0) else acc(i, j)
                    a_, b_ = wf(buf, i), xf(buf, j)
                    A(f"v_mfma_f32_32x32x16_bf16 {acc(i,j)}, v[{a_}:{a_+3}], v[{b_}:{b_+3}], {c}")
                    if k % 2 == 0 and ops:
                        emit_op(ops.pop(0))
                    k += 1
        assert not ops
    stamp()
    A("s_nop 7")
    A("s_nop 3")
    PK = 128
    A("s_add_u32 s44, s54, 4096")
    n = 0
    for i in range(2):
        for half in range(2):
            for j in range(2):
                src = ACC + (i*2+j)*16 + half*8
                dst = PK + n*4
                for e in range(4):
                    A(f"v_cvt_pk_bf16_f32 v{dst+e}, v{src+2*e}, v{src+2*e+1}")
                for e in range(4):
                    A(f"v_pk_max_i16 v{dst+e}, v{dst+e}, 0")
                off = (2*i+half)*2048 + j*1024
                sreg = "s54" if off < 4096 else "s44"
                o = off % 4096
                g.vmem("hst", f"buffer_store_dwordx4 v[{dst}:{dst+3}], v30, s[28:31], {sreg} offen" + (f" offset:{o}" if o else "") + " sc1")
                n += 1
    stamp()
    while next_item <= 10:
        emit_item(next_item); next_item += 1
    g.wait_vm("hst")
    stamp()
    A("v_cmp_ne_u32 vcc, 0, v32")
    A("s_cbranch_vccnz L_epoch_ok")
    A("s_mov_b32 s44, 0")
    g.label("L_epoch_spin")
    A("global_load_dwordx2 v[32:33], v36, s[12:13] sc0 sc1")
    A("s_waitcnt vmcnt(0)")
    A("s_add_u32 s44, s44, 1")
    A("s_cmp_ge_u32 s44, 0x40000")
    A("s_cbranch_scc1 L_epoch_ok")
    A("v_cmp_eq_u32 vcc, 0, v32")
    A("s_cbranch_vccnz L_epoch_spin")
    g.label("L_epoch_ok")
    A("s_mov_b64 exec, 1")
    g.vmem("flag", "buffer_store_dwordx2 v[32:33], v36, s[28:31], s55 offen sc1")
    A("s_mov_b64 exec, -1")
    A("s_barrier")
    emit_item(11)
    def w2addr(u, i):
        slot = [2, 3, 4, 0, 1, 2, 3][u]
        reg = [28, 40, 42][slot // 2] + i
        return reg, (slot % 2)*32768
    for u in range(2):
        g.wait_vm(("w2", u))
        for s in range(4):
            for i in range(2):
                reg, so = w2addr(u, i)
                for jj in range(2):
                    a = (u*4+s)*8 + i*4 + jj*2
                    g.ds(("stash", u), f"ds_read_b64_tr_b16 a[{a}:{a+1}], v{reg} offset:{so + s*2048 + jj*1024}")
        g.wait_lg(("stash", u))
        if u == 1:
            g.vmem("poll", "buffer_load_dwordx2 v[34:35], v31, s[28:31], s57 offen sc1")
        emit_item(12 + u)
    stamp()
    g.wait_vm("poll")
    A("v_cmp_ne_u64 vcc, v[34:35], v[32:33]")
    A("s_cbranch_vccz L_flags_ok")
    A("s_mov_b32 s44, 0")
    g.label("L_poll")
    A("buffer_load_dwordx2 v[34:35], v31, s[28:31], s57 offen sc1")
    A("s_waitcnt vmcnt(0)")
    A("s_add_u32 s44, s44, 1")
    A("s_cmp_ge_u32 s44, 0x40000")
    A("s_cbranch_scc1 L_flags_ok")
    A("v_cmp_ne_u64 vcc, v[34:35], v[32:33]")
    A("s_cbranch_vccnz L_poll")
    g.label("L_flags_ok")
    stamp()
    HB = 128; HN = 12
    WB = 224; WN = 4
    assert HD <= HN
    def hload(step):
        u, s = divmod(step, 4)
        if s == 0:
            A("s_lshl_b32 s58, s48, 13")
            A("s_add_u32 s58, s58, s56")
            A("s_add_u32 s59, s58, 4096")
            inc7(48)
        res = []
        for j in range(2):
            b = HB + (step % HN)*8 + j*4
            off = s*2048 + j*1024
            sreg = "s58" if off < 4096 else "s59"
            o = off % 4096
            res.append((("h", step), f"buffer_load_dwordx4 v[{b}:{b+3}], v30, s[28:31], {sreg} offen" + (f" offset:{o}" if o else "") + " sc1"))
        return res
    def w2reads(step):
        u, s = divmod(step, 4)
        if u < 2: return
        if s == 0: g.wait_vm(("w2", u))
        for i in range(2):
            reg, so = w2addr(u, i)
            for jj in range(2):
                b = WB + (step % WN)*8 + i*4 + jj*2
                g.ds(("wf", step), f"ds_read_b64_tr_b16 v[{b}:{b+1}], v{reg} offset:{so + s*2048 + jj*1024}")
    for st in range(HD):
        for tag, ins in hload(st): g.vmem(tag, ins)
    WD = 2
    for st in range(WD): w2reads(st)
    for st in range(28):
        u, s = divmod(st, 4)
        if st + WD < 28: w2reads(st + WD)
        g.wait_vm(("h", st))
        if st == 0: stamp()
        g.wait_lg(("wf", st))
        lds = hload(st + HD) if st + HD < 28 else []
        k = 0
        for i in range(2):
            for j in range(2):
                c = "0" if st == 0 else acc(i, j)
                hb = HB + (st % HN)*8 + j*4
                if u < 2:
                    a0 = (u*4+s)*8 + i*4
                    wop = f"a[{a0}:{a0+3}]"
                else:
                    b = WB + (st % WN)*8 + i*4
                    wop = f"v[{b}:{b+3}]"
                A(f"v_mfma_f32_32x32x16_bf16 {acc(i,j)}, {wop}, v[{hb}:{hb+3}], {c}")
                if k % 2 == 0 and lds:
                    tag, ins = lds.pop(0)
                    g.vmem(tag, ins)
                k += 1
    stamp()
    A("s_nop 7")
    A("s_nop 3")
    A("v_add_u32 v2, s51, v30")
    A("v_add_u32 v3, 0x10000, v2")
    for q in range(4):
        A(f"s_cmp_eq_u32 s43, {q}")
        A(f"s_cbranch_scc1 L_skipw{q}")
        for p in range(4):
            b = ACC + q*16 + p*4
            A(f"ds_write_b128 v{2 + q//2}, v[{b}:{b+3}] offset:{(q%2)*32768 + p*1024}")
        g.label(f"L_skipw{q}")
    for q in range(4):
        A(f"s_cmp_lg_u32 s43, {q}")
        A(f"s_cbranch_scc1 L_skipm{q}")
        for r in range(16):
            A(f"v_mov_b32 v{128+r}, v{ACC+q*16+r}")
        g.label(f"L_skipm{q}")
    A("s_lshl_b32 s44, s43, 15")
    A("v_add_u32 v4, s44, v30")
    for d in range(1, 4):
        A(f"s_add_u32 s44, s43, {d}")
        A("s_and_b32 s44, s44, 3")
        A("s_lshl_b32 s44, s44, 13")
        A(f"v_add_u32 v{4+d}, s44, v4")
    A("s_waitcnt lgkmcnt(0)")
    A("s_barrier")
    g.lg = []
    for d in range(1, 4):
        for p in range(4):
            b = 128 + d*16 + p*4
            g.ds(("red", d), f"ds_read_b128 v[{b}:{b+3}], v{4+d} offset:{p*1024}")
    A("s_lshl_b32 s44, s42, 6")
    A("s_and_b32 s49, s43, 1")
    A("s_lshl_b32 s49, s49, 5")
    A("s_add_u32 s44, s44, s49")
    A("s_mul_i32 s44, s44, 896")
    A("s_lshl_b32 s49, s39, 7")
    A("s_add_u32 s44, s44, s49")
    A("s_lshr_b32 s49, s43, 1")
    A("s_lshl_b32 s49, s49, 6")
    A("s_add_u32 s44, s44, s49")
    A("v_and_b32 v2, 31, v1")
    A("v_mul_u32_u24 v2, 896, v2")
    A("v_lshrrev_b32 v3, 5, v1")
    A("v_lshl_add_u32 v2, v3, 4, v2")
    for d in range(1, 4):
        g.wait_lg(("red", d))
        for r in range(16):
            A(f"v_add_f32 v{128+r}, v{128+r}, v{128+d*16+r}")
    for e in range(8):
        A(f"v_cvt_pk_bf16_f32 v{144+e}, v{128+2*e}, v{128+2*e+1}")
    A("s_nop 1")
    A("v_permlane32_swap_b32 v144, v146")
    A("v_permlane32_swap_b32 v145, v147")
    A("v_permlane32_swap_b32 v148, v150")
    A("v_permlane32_swap_b32 v149, v151")
    A("s_nop 1")
    A("buffer_store_dwordx4 v[144:147], v2, s[32:35], s44 offen")
    A("buffer_store_dwordx4 v[148:151], v2, s[32:35], s44 offen offset:32")
    if stamps:
        stamp()
        A("s_waitcnt vmcnt(0)")
        stamp()
        A("s_memrealtime s[94:95]")
        A("s_waitcnt lgkmcnt(0)")
        A("v_lshrrev_b32 v2, 6, v0")
        A("s_lshl_b32 s44, s2, 2")
        A("v_add_u32 v2, s44, v2")
        A("v_lshlrev_b32 v2, 8, v2")
        A(f"v_add_u32 v2, 0x{STAMP_OFF:x}, v2")
        A("s_mov_b64 exec, 1")
        regs = [62] + [64+2*i for i in range(g.nst)] + [94]
        for i, r in enumerate(regs):
            A(f"v_mov_b32 v4, s{r}")
            A(f"v_mov_b32 v5, s{r+1}")
            A(f"global_store_dwordx2 v2, v[4:5], s[14:15] offset:{8*i}")
            A("s_waitcnt vmcnt(0)")
        A("s_getreg_b32 s44, hwreg(HW_REG_XCC_ID)")
        A("v_mov_b32 v4, s44")
        A("v_mov_b32 v5, 0")
        A(f"global_store_dwordx2 v2, v[4:5], s[14:15] offset:248")
    g.label("L_end")
    A("s_endpgm")
    hdr = HEADER_COMMENTS + f"; @launch grid=({NWG},1,1) block=(256,1,1) lds=163840\n"
    hdr += f'''.amdgcn_target "amdgcn-amd-amdhsa--gfx950"
.text
.globl {KNAME}
.p2align 8
.type {KNAME},@function
{KNAME}:
'''
    ftr = f'''
.section .rodata,"a"
.p2align 6
.amdhsa_kernel {KNAME}
  .amdhsa_next_free_vgpr 320
  .amdhsa_next_free_sgpr 102
  .amdhsa_accum_offset 256
  .amdhsa_group_segment_fixed_size 0
  .amdhsa_kernarg_size 48
  .amdhsa_user_sgpr_count 2
  .amdhsa_user_sgpr_kernarg_segment_ptr 1
  .amdhsa_system_sgpr_workgroup_id_x 1
.end_amdhsa_kernel
'''
    return hdr + "\n".join(g.L) + ftr, g.nst

if __name__ == "__main__":
    ap = argparse.ArgumentParser()
    ap.add_argument("-o", default="standalone__dense_activation_relu__prompt.s")
    ap.add_argument("--D", type=int, default=2)
    ap.add_argument("--HD", type=int, default=8)
    ap.add_argument("--stamps", action="store_true")
    ap.add_argument("--rot1", default="none")
    ap.add_argument("--rot2", default="none")
    a = ap.parse_args()
    s, n = gen(D=a.D, stamps=a.stamps, rot1=a.rot1, rot2=a.rot2, HD=a.HD)
    open(a.o, "w").write(s)
    print("written", a.o, "stamps", n, "lines", s.count("\n"))
```

```python
import sys, argparse

KNAME = "standalone__dense_activation_relu__prompt_kernel"
HEADER_COMMENTS = open("standalone__dense_activation_relu__prompt.s.ref").read().split("; Override")[0]

class G:
    def __init__(self):
        self.L = []
        self.vm = []
        self.lg = []
        self.nst = 0
    def A(self, s):
        self.L.append("    " + s)
    def label(self, s):
        self.L.append(s + ":")
    def C(self, s):
        self.L.append("    ; " + s)
    def vmem(self, tag, s):
        self.A(s); self.vm.append(tag)
    def ds(self, tag, s):
        self.A(s); self.lg.append(tag)
    def _n_after(self, lst, tag):
        idx = max(i for i, t in enumerate(lst) if t == tag)
        return len(lst) - 1 - idx, idx
    def wait_vm(self, tag):
        if tag not in self.vm: return
        n, idx = self._n_after(self.vm, tag)
        assert n <= 63, n
        self.A(f"s_waitcnt vmcnt({n})")
        self.vm = self.vm[idx+1:]
    def wait_lg(self, tag):
        if tag not in self.lg: return
        n, idx = self._n_after(self.lg, tag)
        if n > 15: n = 15; idx = len(self.lg) - 1 - 15
        self.A(f"s_waitcnt lgkmcnt({n})")
        self.lg = self.lg[idx+1:]
    def wait_all(self):
        self.A("s_waitcnt vmcnt(0) lgkmcnt(0)"); self.vm = []; self.lg = []

def gen(D=2, stamps=False, rot1="none", rot2="none", HD=8, probe=None):
    g = G(); A = g.A
    NWG = 224
    FLAG_OFF = 0x800000
    STAMP_OFF = 0x8000000
    g.np = 0
    def stamp():
        if probe is not None:
            if g.np == probe:
                A("s_memrealtime s[96:97]")
            g.np += 1
        if stamps:
            A(f"s_memtime s[{64+2*g.nst}:{65+2*g.nst}]")
            g.nst += 1
            assert g.nst <= 15
    if stamps:
        A("s_memrealtime s[62:63]")
    stamp()
    A(f"s_cmp_ge_u32 s2, {NWG}")
    A("s_cbranch_scc1 L_end")
    A("s_load_dwordx8 s[4:11], s[0:1], 0")
    A("s_load_dwordx4 s[12:15], s[0:1], 32")
    A("s_memrealtime s[60:61]")
    A("s_and_b32 s36, s2, 7")
    A("s_lshr_b32 s37, s2, 3")
    A("s_mul_i32 s38, s37, 37")
    A("s_lshr_b32 s38, s38, 8")
    A("s_mul_i32 s39, s38, 7")
    A("s_sub_u32 s39, s37, s39")
    A("s_lshr_b32 s40, s36, 1")
    A("s_lshl_b32 s40, s40, 2")
    A("s_add_u32 s40, s40, s38")
    A("s_and_b32 s41, s36, 1")
    A("s_mul_i32 s41, s41, 7")
    A("s_add_u32 s41, s41, s39")
    A("s_lshl_b32 s42, s36, 2")
    A("s_add_u32 s42, s42, s38")
    A("v_and_b32 v1, 63, v0")
    A("v_lshrrev_b32 v2, 6, v0")
    A("v_lshrrev_b32 v3, 3, v1")
    A("v_readfirstlane_b32 s43, v2")
    A("v_and_b32 v4, 7, v1")
    A("v_lshl_add_u32 v5, v2, 5, v3")
    A("v_mul_u32_u24 v7, 896, v5")
    A("v_lshrrev_b32 v6, 1, v3")
    A("v_xor_b32 v8, v6, v4")
    A("v_lshl_add_u32 v10, v8, 4, v7")
    A("v_xor_b32 v8, 4, v8")
    A("v_lshl_add_u32 v11, v8, 4, v7")
    A(f"v_add_u32 v11, {7168-1024}, v11")
    A(f"v_add_u32 v12, {2*(7168-1024)}, v10")
    A(f"v_add_u32 v13, {2*(7168-1024)}, v11")
    A("v_mul_u32_u24 v5, 448, v2")
    A("v_add_u32 v5, v5, v3")
    A("v_mul_u32_u24 v7, 896, v5")
    A("v_bfe_u32 v6, v1, 4, 1")
    A("v_lshlrev_b32 v6, 2, v6")
    A("v_xor_b32 v8, v6, v4")
    A("v_lshl_add_u32 v18, v8, 4, v7")
    for i in range(1, 4):
        A(f"v_add_u32 v{18+i}, {i*(7168-1024)}, v18")
    A("v_lshrrev_b32 v3, 4, v1")
    A("v_and_b32 v4, 15, v1")
    A("v_lshl_add_u32 v5, v2, 4, v3")
    A("v_mul_u32_u24 v7, 3584, v5")
    A("v_lshlrev_b32 v6, 2, v3")
    A("v_xor_b32 v8, v6, v4")
    A("v_lshl_add_u32 v14, v8, 4, v7")
    for i in range(1, 4):
        A(f"v_add_u32 v{14+i}, {i*(14336-1024)}, v14")
    A("s_waitcnt lgkmcnt(0)")
    stamp()
    A("s_mul_i32 s44, s40, 114688")
    A("s_add_u32 s16, s4, s44")
    A("s_addc_u32 s17, s5, 0")
    A("s_mov_b32 s18, 114688")
    A("s_mov_b32 s19, 0x20000")
    A("s_lshl_b32 s44, s41, 8")
    A("s_add_u32 s20, s6, s44")
    A("s_addc_u32 s21, s7, 0")
    A("s_sub_u32 s22, 1605632, s44")
    A("s_mov_b32 s23, 0x20000")
    A("s_lshl_b32 s45, s43, 12")
    if rot1 == "none":
        A("s_mov_b32 s46, 0")
    elif rot1 == "g2":
        A("s_add_u32 s46, s38, s39")
        A("s_and_b32 s46, s46, 1")
        A("s_lshl_b32 s46, s46, 2")
    elif rot1 == "full":
        A("s_lshl_b32 s46, s38, 1")
        A("s_add_u32 s46, s46, s39")
        A("s_cmp_ge_u32 s46, 7")
        A("s_cselect_b32 s44, 7, 0")
        A("s_sub_u32 s46, s46, s44")
    elif rot1 == "g3":
        A("s_add_u32 s46, s38, s39")
        A("s_mul_i32 s44, s46, 86")
        A("s_lshr_b32 s44, s44, 8")
        A("s_mul_i32 s44, s44, 3")
        A("s_sub_u32 s46, s46, s44")
        A("s_mul_i32 s46, s46, 5")
        A("s_lshr_b32 s46, s46, 1")

    def inc7(reg):
        A(f"s_add_u32 s{reg}, s{reg}, 1")
        A(f"s_cmp_eq_u32 s{reg}, 7")
        A(f"s_cselect_b32 s{reg}, 0, s{reg}")

    def item_ops(n):
        ops = []
        if n < 7:
            slot = n % 5
            tag = ("p1", n)
            pre = ["s_lshl_b32 s49, s46, 7", f"s_mul_i32 s50, s46, {64*3584}", f"s_add_u32 m0, s45, {slot*32768}", "s_nop 0"]
            for i in range(4):
                off = f" offset:{1024*i}" if i else ""
                ops.append((pre if i == 0 else [], tag, f"buffer_load_dwordx4 v{10+i}, s[16:19], s49 offen{off} lds"))
            for i in range(4):
                off = f" offset:{1024*i}" if i else ""
                pre = [f"s_add_u32 m0, s45, {slot*32768+16384}", "s_add_u32 s46, s46, 1", "s_cmp_eq_u32 s46, 7", "s_cselect_b32 s46, 0, s46"]
                ops.append((pre if i == 0 else [], tag, f"buffer_load_dwordx4 v{14+i}, s[20:23], s50 offen{off} lds"))
        else:
            u = n - 7
            slot = [2, 3, 4, 0, 1, 2, 3][u]
            tag = ("w2", u)
            pre = [f"s_mul_i32 s49, s47, {64*896}", f"s_add_u32 m0, s51, {slot*32768}", f"s_add_u32 s50, s49, {32*896}"]
            for i in range(4):
                off = f" offset:{1024*i}" if i else ""
                ops.append((pre if i == 0 else [], tag, f"buffer_load_dwordx4 v{18+i}, s[24:27], s49 offen{off} lds"))
            for i in range(4):
                off = f" offset:{1024*i}" if i else ""
                pre = [f"s_add_u32 m0, s51, {slot*32768+4096}", "s_add_u32 s47, s47, 1", "s_cmp_eq_u32 s47, 7", "s_cselect_b32 s47, 0, s47"]
                ops.append((pre if i == 0 else [], tag, f"buffer_load_dwordx4 v{18+i}, s[24:27], s50 offen{off} lds"))
        return ops
    def emit_op(op):
        pre, tag, ins = op
        for p in pre: A(p)
        g.vmem(tag, ins)
    def emit_item(n):
        for op in item_ops(n): emit_op(op)

    emit_item(0)
    A("s_or_b32 s44, s2, s43")
    A("s_cmp_lg_u32 s44, 0")
    A("s_cbranch_scc1 L_noepoch")
    A("s_or_b32 s60, s60, 1")
    A("v_mov_b32 v2, s60")
    A("v_mov_b32 v3, s61")
    A("v_mov_b32 v4, 0")
    A("s_mov_b64 exec, 1")
    A("global_store_dwordx2 v4, v[2:3], s[12:13] sc0 sc1")
    A("s_mov_b64 exec, -1")
    A("s_waitcnt vmcnt(0)")
    g.label("L_noepoch")
    for n in range(1, D): emit_item(n)
    A("s_lshl_b32 s44, s39, 7")
    A("s_add_u32 s24, s8, s44")
    A("s_addc_u32 s25, s9, 0")
    A("s_sub_u32 s26, 1605632, s44")
    A("s_mov_b32 s27, 0x20000")
    A("s_lshl_b32 s51, s43, 13")
    if rot2 == "none":
        A("s_mov_b32 s47, 0")
    elif rot2 == "g2":
        A("s_add_u32 s47, s38, s39")
        A("s_and_b32 s47, s47, 1")
        A("s_lshl_b32 s47, s47, 2")
    elif rot2 == "full":
        A("s_lshl_b32 s47, s38, 1")
        A("s_add_u32 s47, s47, s39")
        A("s_cmp_ge_u32 s47, 7")
        A("s_cselect_b32 s44, 7, 0")
        A("s_sub_u32 s47, s47, s44")
    A("s_mov_b32 s48, s47")
    A("s_mov_b32 s28, s14")
    A("s_mov_b32 s29, s15")
    A(f"s_mov_b32 s30, {FLAG_OFF + 16384}")
    A("s_mov_b32 s31, 0x20000")
    A("s_mov_b32 s32, s10")
    A("s_mov_b32 s33, s11")
    A("s_mov_b32 s34, 1835008")
    A("s_mov_b32 s35, 0x20000")
    A("v_and_b32 v2, 31, v1")
    A("v_lshrrev_b32 v3, 5, v1")
    A("v_bfe_u32 v4, v1, 1, 3")
    A("v_xor_b32 v4, v4, v3")
    A("v_lshlrev_b32 v4, 4, v4")
    A("v_lshl_add_u32 v4, v2, 7, v4")
    A("s_lshr_b32 s52, s43, 1")
    A("s_and_b32 s53, s43, 1")
    A("s_lshl_b32 s44, s52, 13")
    A("v_add_u32 v22, s44, v4")
    for s in range(1, 4):
        A(f"v_xor_b32 v{22+s}, {s<<5}, v22")
    A("v_bfe_u32 v5, v1, 2, 2")
    A("v_lshl_add_u32 v6, v3, 3, v5")
    A("v_lshlrev_b32 v6, 8, v6")
    A("v_and_b32 v7, 3, v1")
    A("v_lshlrev_b32 v7, 3, v7")
    A("v_bfe_u32 v8, v1, 4, 1")
    A("v_lshl_add_u32 v7, v8, 5, v7")
    A("s_lshl_b32 s44, s53, 1")
    A("v_xor_b32 v9, s44, v5")
    A("v_lshl_add_u32 v9, v9, 6, v7")
    A("v_add3_u32 v26, v9, v6, 0")
    A("v_add_u32 v26, 16384, v26")
    A("v_xor_b32 v27, 64, v26")
    A("v_lshl_add_u32 v6, v3, 2, v5")
    A("v_lshlrev_b32 v6, 7, v6")
    A("v_lshrrev_b32 v9, 1, v5")
    A("v_lshl_add_u32 v9, v9, 6, v7")
    A("v_add3_u32 v28, v9, v6, s51")
    A("v_xor_b32 v29, 64, v28")
    A("v_add_u32 v40, 0x10000, v28")
    A("v_add_u32 v41, 0x10000, v29")
    A("v_add_u32 v42, 0x20000, v28")
    A("v_add_u32 v43, 0x20000, v29")
    A("v_lshlrev_b32 v30, 4, v1")
    A("v_mov_b32 v36, 0")
    A("s_lshl_b32 s44, s40, 1")
    A("s_add_u32 s44, s44, s52")
    A("s_mul_i32 s54, s44, 112")
    A("s_lshl_b32 s55, s41, 1")
    A("s_add_u32 s55, s55, s53")
    A("s_lshl_b32 s56, s55, 2")
    A("s_add_u32 s54, s54, s56")
    A("s_lshl_b32 s54, s54, 11")
    A("s_mul_i32 s56, s55, 37")
    A("s_lshr_b32 s56, s56, 8")
    A("s_mul_i32 s57, s56, 7")
    A("s_sub_u32 s57, s55, s57")
    A("s_lshl_b32 s44, s44, 2")
    A("s_add_u32 s44, s44, s56")
    A("s_lshl_b32 s44, s44, 7")
    A("s_lshl_b32 s57, s57, 3")
    A("s_add_u32 s55, s44, s57")
    A(f"s_add_u32 s55, s55, {FLAG_OFF}")
    A("s_mul_i32 s56, s42, 112")
    A("s_mul_i32 s57, s43, 28")
    A("s_add_u32 s56, s56, s57")
    A("s_lshl_b32 s56, s56, 11")
    A("s_lshl_b32 s57, s42, 2")
    A("s_add_u32 s57, s57, s43")
    A("s_lshl_b32 s57, s57, 7")
    A(f"s_add_u32 s57, s57, {FLAG_OFF}")
    A("v_min_u32 v31, 6, v1")
    A("v_lshlrev_b32 v31, 3, v31")

    ACC = 64
    def acc(i, j):
        b = ACC + (i*2+j)*16
        return f"v[{b}:{b+15}]"
    FB = 128
    NB = 3
    def xf(buf, j): b = FB + buf*16 + j*4; return b
    def wf(buf, i): b = FB + buf*16 + 8 + i*4; return b

    cur_base = 0
    next_item = D
    for t in range(7):
        slot = t % 5
        want = (slot // 2) * 65536
        g.wait_vm(("p1", t))
        A("s_barrier")
        if t in (0, 3, 6): stamp()
        if want != cur_base:
            d = (want - cur_base) & 0xffffffff
            for r in range(22, 28):
                A(f"v_add_u32 v{r}, 0x{d:x}, v{r}")
            cur_base = want
        so = slot*32768 - want
        def reads(s):
            buf = s % NB
            for j in range(2):
                b = xf(buf, j)
                g.ds(("f", t, s), f"ds_read_b128 v[{b}:{b+3}], v{22+s} offset:{so + j*4096}")
            for i in range(2):
                b = wf(buf, i)
                for jj in range(2):
                    g.ds(("f", t, s), f"ds_read_b64_tr_b16 v[{b+2*jj}:{b+2*jj+1}], v{26+i} offset:{so + s*4096 + jj*1024}")
        ops = []
        if next_item <= 10 and next_item - 5 <= t - 1:
            ops = item_ops(next_item); next_item += 1
        if t == 3:
            g.vmem("epoch", "global_load_dwordx2 v[32:33], v36, s[12:13] sc0 sc1")
        reads(0); reads(1)
        for s in range(4):
            if s + 2 < 4: reads(s + 2)
            g.wait_lg(("f", t, s))
            buf = s % NB
            k = 0
            for i in range(2):
                for j in range(2):
                    c = "0" if (t == 0 and s == 0) else acc(i, j)
                    a_, b_ = wf(buf, i), xf(buf, j)
                    A(f"v_mfma_f32_32x32x16_bf16 {acc(i,j)}, v[{a_}:{a_+3}], v[{b_}:{b_+3}], {c}")
                    if k % 2 == 0 and ops:
                        emit_op(ops.pop(0))
                    k += 1
        assert not ops
    stamp()
    A("s_nop 7")
    A("s_nop 3")
    PK = 128
    A("s_add_u32 s44, s54, 4096")
    n = 0
    for i in range(2):
        for half in range(2):
            for j in range(2):
                src = ACC + (i*2+j)*16 + half*8
                dst = PK + n*4
                for e in range(4):
                    A(f"v_cvt_pk_bf16_f32 v{dst+e}, v{src+2*e}, v{src+2*e+1}")
                for e in range(4):
                    A(f"v_pk_max_i16 v{dst+e}, v{dst+e}, 0")
                off = (2*i+half)*2048 + j*1024
                sreg = "s54" if off < 4096 else "s44"
                o = off % 4096
                g.vmem("hst", f"buffer_store_dwordx4 v[{dst}:{dst+3}], v30, s[28:31], {sreg} offen" + (f" offset:{o}" if o else "") + " sc1")
                n += 1
    stamp()
    while next_item <= 10:
        emit_item(next_item); next_item += 1
    g.wait_vm("hst")
    stamp()
    A("v_cmp_ne_u32 vcc, 0, v32")
    A("s_cbranch_vccnz L_epoch_ok")
    A("s_mov_b32 s44, 0")
    g.label("L_epoch_spin")
    A("global_load_dwordx2 v[32:33], v36, s[12:13] sc0 sc1")
    A("s_waitcnt vmcnt(0)")
    A("s_add_u32 s44, s44, 1")
    A("s_cmp_ge_u32 s44, 0x40000")
    A("s_cbranch_scc1 L_epoch_ok")
    A("v_cmp_eq_u32 vcc, 0, v32")
    A("s_cbranch_vccnz L_epoch_spin")
    g.label("L_epoch_ok")
    A("s_mov_b64 exec, 1")
    g.vmem("flag", "buffer_store_dwordx2 v[32:33], v36, s[28:31], s55 offen sc1")
    A("s_mov_b64 exec, -1")
    A("s_barrier")
    emit_item(11)
    def w2addr(u, i):
        slot = [2, 3, 4, 0, 1, 2, 3][u]
        reg = [28, 40, 42][slot // 2] + i
        return reg, (slot % 2)*32768
    for u in range(2):
        g.wait_vm(("w2", u))
        for s in range(4):
            for i in range(2):
                reg, so = w2addr(u, i)
                for jj in range(2):
                    a = (u*4+s)*8 + i*4 + jj*2
                    g.ds(("stash", u), f"ds_read_b64_tr_b16 a[{a}:{a+1}], v{reg} offset:{so + s*2048 + jj*1024}")
        g.wait_lg(("stash", u))
        if u == 1:
            g.vmem("poll", "buffer_load_dwordx2 v[34:35], v31, s[28:31], s57 offen sc1")
        emit_item(12 + u)
    stamp()
    g.wait_vm("poll")
    A("v_cmp_ne_u64 vcc, v[34:35], v[32:33]")
    A("s_cbranch_vccz L_flags_ok")
    A("s_mov_b32 s44, 0")
    g.label("L_poll")
    A("buffer_load_dwordx2 v[34:35], v31, s[28:31], s57 offen sc1")
    A("s_waitcnt vmcnt(0)")
    A("s_add_u32 s44, s44, 1")
    A("s_cmp_ge_u32 s44, 0x40000")
    A("s_cbranch_scc1 L_flags_ok")
    A("v_cmp_ne_u64 vcc, v[34:35], v[32:33]")
    A("s_cbranch_vccnz L_poll")
    g.label("L_flags_ok")
    stamp()
    HB = 128; HN = 12
    WB = 224; WN = 4
    assert HD <= HN
    def hload(step):
        u, s = divmod(step, 4)
        if s == 0:
            A("s_lshl_b32 s58, s48, 13")
            A("s_add_u32 s58, s58, s56")
            A("s_add_u32 s59, s58, 4096")
            inc7(48)
        res = []
        for j in range(2):
            b = HB + (step % HN)*8 + j*4
            off = s*2048 + j*1024
            sreg = "s58" if off < 4096 else "s59"
            o = off % 4096
            res.append((("h", step), f"buffer_load_dwordx4 v[{b}:{b+3}], v30, s[28:31], {sreg} offen" + (f" offset:{o}" if o else "") + " sc1"))
        return res
    def w2reads(step):
        u, s = divmod(step, 4)
        if u < 2: return
        if s == 0: g.wait_vm(("w2", u))
        for i in range(2):
            reg, so = w2addr(u, i)
            for jj in range(2):
                b = WB + (step % WN)*8 + i*4 + jj*2
                g.ds(("wf", step), f"ds_read_b64_tr_b16 v[{b}:{b+1}], v{reg} offset:{so + s*2048 + jj*1024}")
    for st in range(HD):
        for tag, ins in hload(st): g.vmem(tag, ins)
    WD = 2
    for st in range(WD): w2reads(st)
    for st in range(28):
        u, s = divmod(st, 4)
        if st + WD < 28: w2reads(st + WD)
        g.wait_vm(("h", st))
        if st == 0: stamp()
        g.wait_lg(("wf", st))
        lds = hload(st + HD) if st + HD < 28 else []
        k = 0
        for i in range(2):
            for j in range(2):
                c = "0" if st == 0 else acc(i, j)
                hb = HB + (st % HN)*8 + j*4
                if u < 2:
                    a0 = (u*4+s)*8 + i*4
                    wop = f"a[{a0}:{a0+3}]"
                else:
                    b = WB + (st % WN)*8 + i*4
                    wop = f"v[{b}:{b+3}]"
                A(f"v_mfma_f32_32x32x16_bf16 {acc(i,j)}, {wop}, v[{hb}:{hb+3}], {c}")
                if k % 2 == 0 and lds:
                    tag, ins = lds.pop(0)
                    g.vmem(tag, ins)
                k += 1
    stamp()
    A("s_nop 7")
    A("s_nop 3")
    A("v_add_u32 v2, s51, v30")
    A("v_add_u32 v3, 0x10000, v2")
    for q in range(4):
        A(f"s_cmp_eq_u32 s43, {q}")
        A(f"s_cbranch_scc1 L_skipw{q}")
        for p in range(4):
            b = ACC + q*16 + p*4
            A(f"ds_write_b128 v{2 + q//2}, v[{b}:{b+3}] offset:{(q%2)*32768 + p*1024}")
        g.label(f"L_skipw{q}")
    for q in range(4):
        A(f"s_cmp_lg_u32 s43, {q}")
        A(f"s_cbranch_scc1 L_skipm{q}")
        for r in range(16):
            A(f"v_mov_b32 v{128+r}, v{ACC+q*16+r}")
        g.label(f"L_skipm{q}")
    A("s_lshl_b32 s44, s43, 15")
    A("v_add_u32 v4, s44, v30")
    for d in range(1, 4):
        A(f"s_add_u32 s44, s43, {d}")
        A("s_and_b32 s44, s44, 3")
        A("s_lshl_b32 s44, s44, 13")
        A(f"v_add_u32 v{4+d}, s44, v4")
    A("s_waitcnt lgkmcnt(0)")
    A("s_barrier")
    g.lg = []
    for d in range(1, 4):
        for p in range(4):
            b = 128 + d*16 + p*4
            g.ds(("red", d), f"ds_read_b128 v[{b}:{b+3}], v{4+d} offset:{p*1024}")
    A("s_lshl_b32 s44, s42, 6")
    A("s_and_b32 s49, s43, 1")
    A("s_lshl_b32 s49, s49, 5")
    A("s_add_u32 s44, s44, s49")
    A("s_mul_i32 s44, s44, 896")
    A("s_lshl_b32 s49, s39, 7")
    A("s_add_u32 s44, s44, s49")
    A("s_lshr_b32 s49, s43, 1")
    A("s_lshl_b32 s49, s49, 6")
    A("s_add_u32 s44, s44, s49")
    A("v_and_b32 v2, 31, v1")
    A("v_mul_u32_u24 v2, 896, v2")
    A("v_lshrrev_b32 v3, 5, v1")
    A("v_lshl_add_u32 v2, v3, 4, v2")
    for d in range(1, 4):
        g.wait_lg(("red", d))
        for r in range(16):
            A(f"v_add_f32 v{128+r}, v{128+r}, v{128+d*16+r}")
    for e in range(8):
        A(f"v_cvt_pk_bf16_f32 v{144+e}, v{128+2*e}, v{128+2*e+1}")
    A("s_nop 1")
    A("v_permlane32_swap_b32 v144, v146")
    A("v_permlane32_swap_b32 v145, v147")
    A("v_permlane32_swap_b32 v148, v150")
    A("v_permlane32_swap_b32 v149, v151")
    A("s_nop 1")
    A("buffer_store_dwordx4 v[144:147], v2, s[32:35], s44 offen")
    A("buffer_store_dwordx4 v[148:151], v2, s[32:35], s44 offen offset:32")
    if probe is not None:
        stamp()
        A("s_waitcnt vmcnt(0)")
        stamp()
        A("s_waitcnt lgkmcnt(0)")
        A("v_readfirstlane_b32 s98, v32")
        A("s_nop 3")
        if probe < 0:
            A("s_mov_b32 s96, 2000")
        else:
            A("s_sub_u32 s96, s96, s98")
            A("s_add_u32 s96, s96, 2000")
        A("s_min_u32 s96, s96, 10000")
        g.label("L_dly")
        A("s_memrealtime s[100:101]")
        A("s_waitcnt lgkmcnt(0)")
        A("s_sub_u32 s100, s100, s98")
        A("s_cmp_lt_u32 s100, s96")
        A("s_cbranch_scc1 L_dly")
    if stamps:
        stamp()
        A("s_waitcnt vmcnt(0)")
        stamp()
        A("s_memrealtime s[94:95]")
        A("s_waitcnt lgkmcnt(0)")
        A("v_lshrrev_b32 v2, 6, v0")
        A("s_lshl_b32 s44, s2, 2")
        A("v_add_u32 v2, s44, v2")
        A("v_lshlrev_b32 v2, 8, v2")
        A(f"v_add_u32 v2, 0x{STAMP_OFF:x}, v2")
        A("s_mov_b64 exec, 1")
        regs = [62] + [64+2*i for i in range(g.nst)] + [94]
        for i, r in enumerate(regs):
            A(f"v_mov_b32 v4, s{r}")
            A(f"v_mov_b32 v5, s{r+1}")
            A(f"global_store_dwordx2 v2, v[4:5], s[14:15] offset:{8*i}")
            A("s_waitcnt vmcnt(0)")
        A("s_getreg_b32 s44, hwreg(HW_REG_XCC_ID)")
        A("v_mov_b32 v4, s44")
        A("v_mov_b32 v5, 0")
        A(f"global_store_dwordx2 v2, v[4:5], s[14:15] offset:248")
    g.label("L_end")
    A("s_endpgm")
    hdr = HEADER_COMMENTS + f"; @launch grid=({NWG},1,1) block=(256,1,1) lds=163840\n"
    hdr += f'''.amdgcn_target "amdgcn-amd-amdhsa--gfx950"
.text
.globl {KNAME}
.p2align 8
.type {KNAME},@function
{KNAME}:
'''
    ftr = f'''
.section .rodata,"a"
.p2align 6
.amdhsa_kernel {KNAME}
  .amdhsa_next_free_vgpr 320
  .amdhsa_next_free_sgpr 102
  .amdhsa_accum_offset 256
  .amdhsa_group_segment_fixed_size 0
  .amdhsa_kernarg_size 48
  .amdhsa_user_sgpr_count 2
  .amdhsa_user_sgpr_kernarg_segment_ptr 1
  .amdhsa_system_sgpr_workgroup_id_x 1
.end_amdhsa_kernel
'''
    return hdr + "\n".join(g.L) + ftr, g.nst

if __name__ == "__main__":
    ap = argparse.ArgumentParser()
    ap.add_argument("-o", default="standalone__dense_activation_relu__prompt.s")
    ap.add_argument("--D", type=int, default=2)
    ap.add_argument("--HD", type=int, default=8)
    ap.add_argument("--stamps", action="store_true")
    ap.add_argument("--rot1", default="none")
    ap.add_argument("--rot2", default="none")
    ap.add_argument("--probe", type=int, default=None)
    a = ap.parse_args()
    s, n = gen(D=a.D, stamps=a.stamps, rot1=a.rot1, rot2=a.rot2, HD=a.HD, probe=a.probe)
    open(a.o, "w").write(s)
    print("written", a.o, "stamps", n, "lines", s.count("\n"))
```

```python
import sys, argparse
sys.path.insert(0, "gen")
from k1 import G, KNAME, HEADER_COMMENTS

def gen(D=2, stamps=False, rot1="g3", rot2="xcd", HD=8, probe=None, helpers=1, outpol=" nt", hrot=0, pre_w2=2):
    g = G(); A = g.A
    NWG = 224
    GRID = 256 if helpers else 224
    FLAG_OFF = 0x800000
    STAMP_OFF = 0x8000000
    g.np = 0
    names = []
    def stamp(name):
        names.append(name)
        if probe is not None:
            if g.np == probe:
                A("s_memrealtime s[96:97]")
            g.np += 1
        if stamps:
            A(f"s_memtime s[{64+2*g.nst}:{65+2*g.nst}]")
            g.nst += 1
            assert g.nst <= 15
    def mod7(reg, tmp="s44"):
        A(f"s_cmp_ge_u32 {reg}, 7")
        A(f"s_cselect_b32 {tmp}, 7, 0")
        A(f"s_sub_u32 {reg}, {reg}, {tmp}")
    if stamps:
        A("s_memrealtime s[62:63]")
    stamp("start")
    A(f"s_cmp_ge_u32 s2, {GRID}")
    A("s_cbranch_scc1 L_end")
    A("s_load_dwordx8 s[4:11], s[0:1], 0")
    A("s_load_dwordx4 s[12:15], s[0:1], 32")
    A("s_memrealtime s[60:61]")
    A("s_and_b32 s36, s2, 7")
    A("s_lshr_b32 s37, s2, 3")
    A("v_and_b32 v1, 63, v0")
    A("v_lshrrev_b32 v2, 6, v0")
    A("v_lshrrev_b32 v3, 3, v1")
    A("v_readfirstlane_b32 s43, v2")
    if rot2 == "xcd":
        A("s_mov_b32 s47, s36")
        mod7("s47")
    else:
        A("s_mov_b32 s47, 0")
    if helpers:
        A(f"s_cmp_ge_u32 s2, {NWG}")
        A("s_cbranch_scc1 L_helper")
    A("s_mul_i32 s38, s37, 37")
    A("s_lshr_b32 s38, s38, 8")
    A("s_mul_i32 s39, s38, 7")
    A("s_sub_u32 s39, s37, s39")
    A("s_lshr_b32 s40, s36, 1")
    A("s_lshl_b32 s40, s40, 2")
    A("s_add_u32 s40, s40, s38")
    A("s_and_b32 s41, s36, 1")
    A("s_mul_i32 s41, s41, 7")
    A("s_add_u32 s41, s41, s39")
    A("s_lshl_b32 s42, s36, 2")
    A("s_add_u32 s42, s42, s38")
    A("v_and_b32 v4, 7, v1")
    A("v_lshl_add_u32 v5, v2, 5, v3")
    A("v_mul_u32_u24 v7, 896, v5")
    A("v_lshrrev_b32 v6, 1, v3")
    A("v_xor_b32 v8, v6, v4")
    A("v_lshl_add_u32 v10, v8, 4, v7")
    A("v_xor_b32 v8, 4, v8")
    A("v_lshl_add_u32 v11, v8, 4, v7")
    A(f"v_add_u32 v11, {7168-1024}, v11")
    A(f"v_add_u32 v12, {2*(7168-1024)}, v10")
    A(f"v_add_u32 v13, {2*(7168-1024)}, v11")
    A("v_lshrrev_b32 v9, 4, v1")
    A("v_and_b32 v37, 15, v1")
    A("v_lshl_add_u32 v5, v2, 4, v9")
    A("v_mul_u32_u24 v7, 3584, v5")
    A("v_lshlrev_b32 v6, 2, v9")
    A("v_xor_b32 v8, v6, v37")
    A("v_lshl_add_u32 v14, v8, 4, v7")
    for i in range(1, 4):
        A(f"v_add_u32 v{14+i}, {i*(14336-1024)}, v14")
    A("s_lshl_b32 s45, s43, 12")
    if rot1 == "none":
        A("s_mov_b32 s46, 0")
    elif rot1 == "g2":
        A("s_add_u32 s46, s38, s39")
        A("s_and_b32 s46, s46, 1")
        A("s_lshl_b32 s46, s46, 2")
    elif rot1 == "full":
        A("s_lshl_b32 s46, s38, 1")
        A("s_add_u32 s46, s46, s39")
        mod7("s46")
    elif rot1 == "g3":
        A("s_add_u32 s46, s38, s39")
        A("s_mul_i32 s44, s46, 86")
        A("s_lshr_b32 s44, s44, 8")
        A("s_mul_i32 s44, s44, 3")
        A("s_sub_u32 s46, s46, s44")
        A("s_mul_i32 s46, s46, 5")
        A("s_lshr_b32 s46, s46, 1")
    elif rot1 == "g4":
        A("s_add_u32 s46, s38, s39")
        A("s_and_b32 s46, s46, 3")
        A("s_mul_i32 s46, s46, 7")
        A("s_lshr_b32 s46, s46, 2")
    A("s_mul_i32 s44, s40, 114688")
    A("s_lshl_b32 s49, s41, 8")
    A("s_mov_b32 s18, 114688")
    A("s_mov_b32 s19, 0x20000")
    A("s_sub_u32 s22, 1605632, s49")
    A("s_mov_b32 s23, 0x20000")
    A("s_waitcnt lgkmcnt(0)")
    stamp("karg")
    A("s_add_u32 s16, s4, s44")
    A("s_addc_u32 s17, s5, 0")
    A("s_add_u32 s20, s6, s49")
    A("s_addc_u32 s21, s7, 0")

    def item_ops(n):
        ops = []
        if n < 7:
            slot = n % 5
            tag = ("p1", n)
            pre = ["s_lshl_b32 s49, s46, 7", f"s_add_u32 m0, s45, {slot*32768}", f"s_mul_i32 s50, s46, {64*3584}"]
            for i in range(4):
                off = f" offset:{1024*i}" if i else ""
                ops.append((pre if i == 0 else [], tag, f"buffer_load_dwordx4 v{10+i}, s[16:19], s49 offen{off} lds"))
            for i in range(4):
                off = f" offset:{1024*i}" if i else ""
                pre = [f"s_add_u32 m0, s45, {slot*32768+16384}", "s_add_u32 s46, s46, 1", "s_cmp_eq_u32 s46, 7", "s_cselect_b32 s46, 0, s46"]
                ops.append((pre if i == 0 else [], tag, f"buffer_load_dwordx4 v{14+i}, s[20:23], s50 offen{off} lds"))
        else:
            u = n - 7
            slot = [2, 3, 4, 0, 1, 2, 3][u]
            tag = ("w2", u)
            pre = [f"s_mul_i32 s49, s47, {64*896}", f"s_add_u32 m0, s51, {slot*32768}", f"s_add_u32 s50, s49, {32*896}"]
            for i in range(4):
                off = f" offset:{1024*i}" if i else ""
                ops.append((pre if i == 0 else [], tag, f"buffer_load_dwordx4 v{18+i}, s[24:27], s49 offen{off} lds"))
            for i in range(4):
                off = f" offset:{1024*i}" if i else ""
                pre = [f"s_add_u32 m0, s51, {slot*32768+4096}", "s_add_u32 s47, s47, 1", "s_cmp_eq_u32 s47, 7", "s_cselect_b32 s47, 0, s47"]
                ops.append((pre if i == 0 else [], tag, f"buffer_load_dwordx4 v{18+i}, s[24:27], s50 offen{off} lds"))
        return ops
    def emit_op(op):
        pre, tag, ins = op
        for p in pre: A(p)
        g.vmem(tag, ins)
    def emit_item(n):
        for op in item_ops(n): emit_op(op)

    emit_item(0)
    A("v_mul_u32_u24 v5, 448, v2")
    A("v_add_u32 v5, v5, v3")
    A("v_mul_u32_u24 v7, 896, v5")
    A("v_bfe_u32 v6, v1, 4, 1")
    A("v_lshlrev_b32 v6, 2, v6")
    A("v_xor_b32 v8, v6, v4")
    A("v_lshl_add_u32 v18, v8, 4, v7")
    for i in range(1, 4):
        A(f"v_add_u32 v{18+i}, {i*(7168-1024)}, v18")
    A("s_lshl_b32 s44, s39, 7")
    A("s_add_u32 s24, s8, s44")
    A("s_addc_u32 s25, s9, 0")
    A("s_sub_u32 s26, 1605632, s44")
    A("s_mov_b32 s27, 0x20000")
    A("s_lshl_b32 s51, s43, 13")
    A("s_mov_b32 s48, s47")
    A("s_mov_b32 s28, s14")
    A("s_mov_b32 s29, s15")
    A(f"s_mov_b32 s30, {FLAG_OFF + 16384}")
    A("s_mov_b32 s31, 0x20000")
    A("s_mov_b32 s32, s10")
    A("s_mov_b32 s33, s11")
    A("s_mov_b32 s34, 1835008")
    A("s_mov_b32 s35, 0x20000")
    A("v_and_b32 v2, 31, v1")
    A("v_lshrrev_b32 v3, 5, v1")
    A("v_bfe_u32 v4, v1, 1, 3")
    A("v_xor_b32 v4, v4, v3")
    A("v_lshlrev_b32 v4, 4, v4")
    A("v_lshl_add_u32 v4, v2, 7, v4")
    A("s_lshr_b32 s52, s43, 1")
    A("s_and_b32 s53, s43, 1")
    A("s_lshl_b32 s44, s52, 13")
    A("v_add_u32 v22, s44, v4")
    for s in range(1, 4):
        A(f"v_xor_b32 v{22+s}, {s<<5}, v22")
    A("v_bfe_u32 v5, v1, 2, 2")
    A("v_lshl_add_u32 v6, v3, 3, v5")
    A("v_lshlrev_b32 v6, 8, v6")
    A("v_and_b32 v7, 3, v1")
    A("v_lshlrev_b32 v7, 3, v7")
    A("v_bfe_u32 v8, v1, 4, 1")
    A("v_lshl_add_u32 v7, v8, 5, v7")
    A("s_lshl_b32 s44, s53, 1")
    A("v_xor_b32 v9, s44, v5")
    A("v_lshl_add_u32 v9, v9, 6, v7")
    A("v_add_u32 v26, v9, v6")
    A("v_add_u32 v26, 16384, v26")
    A("v_xor_b32 v27, 64, v26")
    A("v_lshl_add_u32 v6, v3, 2, v5")
    A("v_lshlrev_b32 v6, 7, v6")
    A("v_lshrrev_b32 v9, 1, v5")
    A("v_xor_b32 v9, s52, v9")
    A("v_lshl_add_u32 v9, v9, 6, v7")
    A("v_add3_u32 v28, v9, v6, s51")
    A("v_xor_b32 v29, 64, v28")
    A("v_add_u32 v40, 0x10000, v28")
    A("v_add_u32 v41, 0x10000, v29")
    A("v_add_u32 v42, 0x20000, v28")
    A("v_add_u32 v43, 0x20000, v29")
    A("v_lshlrev_b32 v30, 4, v1")
    A("s_lshl_b32 s44, s53, 10")
    A("v_add_u32 v44, s44, v30")
    A("v_xor_b32 v45, 0x400, v44")
    A("v_mov_b32 v36, 0")
    A("s_or_b32 s44, s2, s43")
    A("s_cmp_lg_u32 s44, 0")
    A("s_cbranch_scc1 L_noepoch")
    A("s_or_b32 s60, s60, 1")
    A("v_mov_b32 v46, s60")
    A("v_mov_b32 v47, s61")
    A("s_mov_b64 exec, 1")
    A("global_store_dwordx2 v36, v[46:47], s[12:13] sc0 sc1")
    A("s_mov_b64 exec, -1")
    A("s_waitcnt vmcnt(0)")
    g.label("L_noepoch")
    for n in range(1, D): emit_item(n)
    A("s_lshl_b32 s44, s40, 1")
    A("s_add_u32 s44, s44, s52")
    A("s_mul_i32 s54, s44, 112")
    A("s_lshl_b32 s55, s41, 1")
    A("s_add_u32 s55, s55, s53")
    A("s_lshl_b32 s56, s55, 2")
    A("s_add_u32 s54, s54, s56")
    A("s_lshl_b32 s54, s54, 11")
    A("s_mul_i32 s56, s55, 37")
    A("s_lshr_b32 s56, s56, 8")
    A("s_mul_i32 s57, s56, 7")
    A("s_sub_u32 s57, s55, s57")
    A("s_lshl_b32 s44, s44, 2")
    A("s_add_u32 s44, s44, s56")
    A("s_lshl_b32 s44, s44, 7")
    A("s_lshl_b32 s57, s57, 3")
    A("s_add_u32 s55, s44, s57")
    A(f"s_add_u32 s55, s55, {FLAG_OFF}")
    A("s_mul_i32 s56, s42, 112")
    A("s_mul_i32 s57, s43, 28")
    A("s_add_u32 s56, s56, s57")
    A("s_lshl_b32 s56, s56, 11")
    A("s_lshl_b32 s57, s42, 2")
    A("s_add_u32 s57, s57, s43")
    A("s_lshl_b32 s57, s57, 7")
    A(f"s_add_u32 s57, s57, {FLAG_OFF}")
    A("v_min_u32 v31, 6, v1")
    A("v_lshlrev_b32 v31, 3, v31")
    A("s_lshl_b32 s44, s42, 6")
    A("s_lshl_b32 s58, s53, 5")
    A("s_add_u32 s44, s44, s58")
    A("s_mul_i32 s44, s44, 896")
    A("s_lshl_b32 s58, s39, 7")
    A("s_add_u32 s44, s44, s58")
    A("s_lshl_b32 s58, s52, 6")
    A("s_add_u32 s99, s44, s58")
    A("v_mul_u32_u24 v38, 896, v2")
    A("v_lshl_add_u32 v38, v3, 4, v38")
    A("v_add_u32 v48, s51, v30")
    A("v_add_u32 v49, 0x10000, v48")
    A("v_xor_b32 v50, 0x2000, v48")
    A("v_xor_b32 v51, 0x4000, v49")
    A("v_xor_b32 v52, 0x6000, v49")

    ACC = 64
    def acc(i, j):
        b = ACC + (i*2+j)*16
        return f"v[{b}:{b+15}]"
    FB = 128
    def xf(buf, j): return FB + buf*16 + j*4
    def wf(buf, i): return FB + buf*16 + 8 + i*4

    state = {"base": 0}
    def chunk_sync(t):
        g.wait_vm(("p1", t))
        if g.lg:
            A("s_waitcnt lgkmcnt(0)"); g.lg = []
        A("s_barrier")
        if t in (0, 3, 6): stamp(f"c{t}")
        want = ((t % 5) // 2) * 65536
        if want != state["base"]:
            d = (want - state["base"]) & 0xffffffff
            for r in range(22, 28):
                A(f"v_add_u32 v{r}, 0x{d:x}, v{r}")
            state["base"] = want
    def reads(n):
        t, s = divmod(n, 4)
        so = (t % 5)*32768 - state["base"]
        buf = n % 2
        def w(i):
            b = wf(buf, i)
            return [(("w", n, i), f"ds_read_b64_tr_b16 v[{b+2*jj}:{b+2*jj+1}], v{26+i} offset:{so + s*4096 + jj*1024}") for jj in range(2)]
        def x(j):
            b = xf(buf, j)
            return [(("x", n, j), f"ds_read_b128 v[{b}:{b+3}], v{22+s} offset:{so + j*4096}")]
        return w(0) + x(0) + x(1) + w(1)
    next_item = D
    last_pre = 6 + pre_w2
    ops = []
    chunk_sync(0)
    for tag, ins in reads(0): g.ds(tag, ins)
    for n in range(28):
        t, s = divmod(n, 4)
        rd = []
        if n + 1 < 28:
            if (n + 1) % 4 == 0:
                chunk_sync((n + 1)//4)
            rd = reads(n + 1)
        tt = min((n + 1)//4, 6)
        if not ops and next_item <= last_pre and next_item - 5 <= tt - 1 and next_item <= t + D + (1 if s == 3 else 0):
            ops = item_ops(next_item); next_item += 1
        if n == 12:
            g.vmem("epoch", "global_load_dwordx2 v[32:33], v36, s[12:13] sc0 sc1")
        buf = n % 2
        order = [(0, 0), (0, 1), (1, 0), (1, 1)]
        for k, (i, j) in enumerate(order):
            if k == 0:
                g.wait_lg(("x", n, 0))
                for _ in range(3):
                    if rd: tag, ins = rd.pop(0); g.ds(tag, ins)
            elif k == 1:
                g.wait_lg(("x", n, 1))
            elif k == 2:
                g.wait_lg(("w", n, 1))
            c = "0" if n == 0 else acc(i, j)
            a_, b_ = wf(buf, i), xf(buf, j)
            A(f"v_mfma_f32_32x32x16_bf16 {acc(i,j)}, v[{a_}:{a_+3}], v[{b_}:{b_+3}], {c}")
            if k == 0:
                while rd: tag, ins = rd.pop(0); g.ds(tag, ins)
            if k in (1, 2) and ops:
                emit_op(ops.pop(0))
    while ops: emit_op(ops.pop(0))
    stamp("p1end")
    A("s_add_u32 s44, s54, 4096")
    A("s_nop 7")
    PK = 160
    n = 0
    for i in range(2):
        for j in range(2):
            if (i, j) == (1, 1): A("s_nop 3")
            for half in range(2):
                src = ACC + (i*2+j)*16 + half*8
                dst = PK + n*4
                for e in range(4):
                    A(f"v_cvt_pk_bf16_f32 v{dst+e}, v{src+2*e}, v{src+2*e+1}")
                for e in range(4):
                    A(f"v_pk_max_i16 v{dst+e}, v{dst+e}, 0")
                off = (2*i+half)*2048 + j*1024
                sreg = "s54" if off < 4096 else "s44"
                o = off % 4096
                g.vmem("hst", f"buffer_store_dwordx4 v[{dst}:{dst+3}], v30, s[28:31], {sreg} offen" + (f" offset:{o}" if o else "") + " sc1")
                n += 1
    stamp("hst_iss")
    A("s_barrier")
    emit_item(next_item); next_item += 1
    g.wait_vm("hst")
    stamp("hst_done")
    A("v_cmp_ne_u32 vcc, 0, v32")
    A("s_cbranch_vccnz L_epoch_ok")
    A("s_mov_b32 s44, 0")
    g.label("L_epoch_spin")
    A("global_load_dwordx2 v[32:33], v36, s[12:13] sc0 sc1")
    A("s_waitcnt vmcnt(0)")
    A("s_add_u32 s44, s44, 1")
    A("s_cmp_ge_u32 s44, 0x40000")
    A("s_cbranch_scc1 L_epoch_ok")
    A("v_cmp_eq_u32 vcc, 0, v32")
    A("s_cbranch_vccnz L_epoch_spin")
    g.label("L_epoch_ok")
    A("s_mov_b64 exec, 1")
    g.vmem("flag", "buffer_store_dwordx2 v[32:33], v36, s[28:31], s55 offen sc1")
    A("s_mov_b64 exec, -1")
    def w2addr(u, i):
        slot = [2, 3, 4, 0, 1, 2, 3][u]
        reg = [28, 40, 42][slot // 2] + i
        return reg, (slot % 2)*32768
    def stash(u):
        g.wait_vm(("w2", u))
        for s in range(4):
            for i in range(2):
                reg, so = w2addr(u, i)
                for jj in range(2):
                    a = (u*4+s)*8 + i*4 + jj*2
                    g.ds(("stash", u), f"ds_read_b64_tr_b16 a[{a}:{a+1}], v{reg} offset:{so + s*2048 + jj*1024}")
    if next_item >= 9:
        stash(0); stash(1)
        while next_item <= 11:
            emit_item(next_item); next_item += 1
    else:
        while next_item <= 11:
            emit_item(next_item); next_item += 1
        stash(0); stash(1)
    g.wait_lg(("stash", 1))
    emit_item(12)
    g.vmem("poll", "buffer_load_dwordx2 v[34:35], v31, s[28:31], s57 offen sc1")
    emit_item(13)
    stamp("w2iss")
    g.wait_vm("poll")
    A("v_cmp_ne_u64 vcc, v[34:35], v[32:33]")
    A("s_cbranch_vccz L_flags_ok")
    A("s_mov_b32 s44, 0")
    g.label("L_poll")
    A("buffer_load_dwordx2 v[34:35], v31, s[28:31], s57 offen sc1")
    A("s_waitcnt vmcnt(0)")
    A("s_add_u32 s44, s44, 1")
    A("s_cmp_ge_u32 s44, 0x40000")
    A("s_cbranch_scc1 L_flags_ok")
    A("v_cmp_ne_u64 vcc, v[34:35], v[32:33]")
    A("s_cbranch_vccnz L_poll")
    g.label("L_flags_ok")
    stamp("flags")
    HB = 128; HN = 12
    WB = 224; WN = 4
    assert HD < HN
    def hload(step):
        u, s = divmod(step, 4)
        if s == 0:
            A("s_lshl_b32 s58, s48, 13")
            A("s_add_u32 s58, s58, s56")
            A("s_add_u32 s59, s58, 4096")
            A("s_add_u32 s48, s48, 1")
            A("s_cmp_eq_u32 s48, 7")
            A("s_cselect_b32 s48, 0, s48")
        res = []
        for j in range(2):
            b = HB + (step % HN)*8 + j*4
            off = s*2048
            sreg = "s58" if off < 4096 else "s59"
            o = off % 4096
            res.append((("h", step, j), f"buffer_load_dwordx4 v[{b}:{b+3}], v{44+j}, s[28:31], {sreg} offen" + (f" offset:{o}" if o else "") + " sc1"))
        return res
    def w2reads(step):
        u, s = divmod(step, 4)
        if u < 2: return
        if s == 0: g.wait_vm(("w2", u))
        for i in range(2):
            reg, so = w2addr(u, i)
            for jj in range(2):
                b = WB + (step % WN)*8 + i*4 + jj*2
                g.ds(("wf", step), f"ds_read_b64_tr_b16 v[{b}:{b+1}], v{reg} offset:{so + s*2048 + jj*1024}")
    for st in range(HD):
        for tag, ins in hload(st): g.vmem(tag, ins)
    WD = 2
    for st in range(WD): w2reads(st)
    for st in range(28):
        u, s = divmod(st, 4)
        if st + WD < 28: w2reads(st + WD)
        g.wait_vm(("h", st, 0))
        if st == 0: stamp("h0")
        g.wait_lg(("wf", st))
        lds = hload(st + HD) if st + HD < 28 else []
        order = [(0, 0), (1, 0), (0, 1), (1, 1)]
        if st == 27: order = [(1, 0), (0, 1), (1, 1), (0, 0)]
        for k, (i, j) in enumerate(order):
            if j == 1: g.wait_vm(("h", st, 1))
            c = "0" if st == 0 else acc(i, j)
            hb = HB + (st % HN)*8 + j*4
            if u < 2:
                a0 = (u*4+s)*8 + i*4
                wop = f"a[{a0}:{a0+3}]"
            else:
                b = WB + (st % WN)*8 + i*4
                wop = f"v[{b}:{b+3}]"
            A(f"v_mfma_f32_32x32x16_bf16 {acc(i,j)}, {wop}, v[{hb}:{hb+3}], {c}")
            if k % 2 == 0 and lds:
                tag, ins = lds.pop(0)
                g.vmem(tag, ins)
    stamp("p2end")
    A("s_nop 7")
    A("s_nop 1")
    for q in (2, 1, 3):
        for p in range(4):
            b = ACC + q*16 + p*4
            A(f"ds_write_b128 v{48 + q//2}, v[{b}:{b+3}] offset:{(q%2)*32768 + p*1024}")
    A("s_waitcnt lgkmcnt(0)")
    A("s_barrier")
    g.lg = []
    for p in range(4):
        for q in range(1, 4):
            b = 128 + (q-1)*16 + p*4
            g.ds(("red", p), f"ds_read_b128 v[{b}:{b+3}], v{49+q} offset:{(q%2)*32768 + p*1024}")
    for p in range(4):
        g.wait_lg(("red", p))
        for r in range(4*p, 4*p+4):
            A(f"v_add_f32 v{128+r}, v{128+r}, v{144+r}")
            A(f"v_add_f32 v{ACC+r}, v{ACC+r}, v{160+r}")
        for r in range(4*p, 4*p+4):
            A(f"v_add_f32 v{ACC+r}, v{ACC+r}, v{128+r}")
        A(f"v_cvt_pk_bf16_f32 v{176+2*p}, v{ACC+4*p}, v{ACC+4*p+1}")
        A(f"v_cvt_pk_bf16_f32 v{177+2*p}, v{ACC+4*p+2}, v{ACC+4*p+3}")
        if p % 2 == 1:
            b = 176 + 2*(p-1)
            A("s_nop 1")
            A(f"v_permlane32_swap_b32 v{b}, v{b+2}")
            A(f"v_permlane32_swap_b32 v{b+1}, v{b+3}")
            A(f"buffer_store_dwordx4 v[{b}:{b+3}], v38, s[32:35], s99 offen" + (" offset:32" if p == 3 else "") + outpol)
    if probe is not None:
        stamp("st_iss")
        A("s_waitcnt vmcnt(0)")
        stamp("st_done")
        A("s_waitcnt lgkmcnt(0)")
        A("s_add_u32 s96, s96, 2000")
        g.label("L_dly")
        A("s_memrealtime s[100:101]")
        A("s_waitcnt lgkmcnt(0)")
        A("s_sub_u32 s100, s100, s96")
        A("s_cmp_lt_i32 s100, 0")
        A("s_cbranch_scc1 L_dly")
    def dump_stamps():
        A("s_memrealtime s[94:95]")
        A("s_waitcnt lgkmcnt(0)")
        A("v_lshrrev_b32 v2, 6, v0")
        A("s_lshl_b32 s44, s2, 2")
        A("v_add_u32 v2, s44, v2")
        A("v_lshlrev_b32 v2, 8, v2")
        A(f"v_add_u32 v2, 0x{STAMP_OFF:x}, v2")
        A("s_mov_b64 exec, 1")
        regs = [62] + [64+2*i for i in range(g.nst)] + [94]
        for i, r in enumerate(regs):
            A(f"v_mov_b32 v4, s{r}")
            A(f"v_mov_b32 v5, s{r+1}")
            A(f"global_store_dwordx2 v2, v[4:5], s[14:15] offset:{8*i}")
            A("s_waitcnt vmcnt(0)")
        A("s_getreg_b32 s44, hwreg(HW_REG_XCC_ID)")
        A("v_mov_b32 v4, s44")
        A("v_mov_b32 v5, 0")
        A(f"global_store_dwordx2 v2, v[4:5], s[14:15] offset:248")
    if stamps:
        stamp("st_iss")
        A("s_waitcnt vmcnt(0)")
        stamp("st_done")
        dump_stamps()
    g.label("L_end")
    A("s_endpgm")
    if helpers:
        g.label("L_helper")
        A("s_sub_u32 s38, s37, 28")
        A(f"s_mul_i32 s38, s38, {448*896}")
        A(f"s_mul_i32 s39, s43, {112*128}")
        A("s_add_u32 s38, s38, s39")
        A("v_lshlrev_b32 v4, 7, v1")
        A("v_add_u32 v5, 0x2000, v4")
        A(f"v_min_u32 v5, {111*128}, v5")
        A("s_mov_b32 s26, 1605632")
        A("s_mov_b32 s27, 0x20000")
        A("s_waitcnt lgkmcnt(0)")
        A("s_mov_b32 s24, s8")
        A("s_mov_b32 s25, s9")
        for u in range(7):
            A(f"s_mul_i32 s49, s47, {64*896}")
            A("s_add_u32 s49, s49, s38")
            A("buffer_load_dword v6, v4, s[24:27], s49 offen")
            A("buffer_load_dword v6, v5, s[24:27], s49 offen")
            A("s_add_u32 s47, s47, 1")
            A("s_cmp_eq_u32 s47, 7")
            A("s_cselect_b32 s47, 0, s47")
            if stamps:
                A(f"s_memtime s[{66+2*u}:{67+2*u}]")
        if stamps:
            A("s_waitcnt vmcnt(0)")
            for u in range(7, g.nst - 1):
                A(f"s_memtime s[{66+2*u}:{67+2*u}]")
            dump_stamps()
        A("s_endpgm")
    hdr = HEADER_COMMENTS + f"; @launch grid=({GRID},1,1) block=(256,1,1) lds=163840\n"
    hdr += f'''.amdgcn_target "amdgcn-amd-amdhsa--gfx950"
.text
.globl {KNAME}
.p2align 8
.type {KNAME},@function
{KNAME}:
'''
    ftr = f'''
.section .rodata,"a"
.p2align 6
.amdhsa_kernel {KNAME}
  .amdhsa_next_free_vgpr 320
  .amdhsa_next_free_sgpr 102
  .amdhsa_accum_offset 256
  .amdhsa_group_segment_fixed_size 0
  .amdhsa_kernarg_size 48
  .amdhsa_user_sgpr_count 2
  .amdhsa_user_sgpr_kernarg_segment_ptr 1
  .amdhsa_system_sgpr_workgroup_id_x 1
.end_amdhsa_kernel
'''
    return hdr + "\n".join(g.L) + ftr, names

if __name__ == "__main__":
    ap = argparse.ArgumentParser()
    ap.add_argument("-o", default="standalone__dense_activation_relu__prompt.s")
    ap.add_argument("--D", type=int, default=2)
    ap.add_argument("--HD", type=int, default=8)
    ap.add_argument("--stamps", action="store_true")
    ap.add_argument("--rot1", default="g3")
    ap.add_argument("--rot2", default="xcd")
    ap.add_argument("--probe", type=int, default=None)
    ap.add_argument("--helpers", type=int, default=1)
    ap.add_argument("--pre_w2", type=int, default=2)
    ap.add_argument("--outpol", default="nt")
    a = ap.parse_args()
    s, n = gen(D=a.D, stamps=a.stamps, rot1=a.rot1, rot2=a.rot2, HD=a.HD, probe=a.probe, helpers=a.helpers,
               pre_w2=a.pre_w2, outpol=(" " + a.outpol) if a.outpol else "")
    open(a.o, "w").write(s)
    print("written", a.o, "names", ",".join(n), "lines", s.count("\n"))
```

```python
import sys, argparse
sys.path.insert(0, "gen")
from k1 import G, KNAME, HEADER_COMMENTS

def gen(D=2, stamps=False, rot1="g3", rot2="xcd", HD=8, probe=None, helpers=0, outpol="", cpf=1, lead=1, LEAD=18, fast=8, PP=12, xrot1=0):
    g = G(); A = g.A
    NWG = 224
    GRID = 256 if helpers else 224
    FLAG_OFF = 0x800000
    STAMP_OFF = 0x8000000
    g.np = 0
    names = []
    def stamp(name):
        names.append(name)
        if probe is not None:
            if g.np == probe:
                A("s_memrealtime s[96:97]")
            g.np += 1
        if stamps:
            A(f"s_memrealtime s[{64+2*g.nst}:{65+2*g.nst}]")
            g.nst += 1
            assert g.nst <= 15
    def mod7(reg, tmp="s44"):
        A(f"s_cmp_ge_u32 {reg}, 7")
        A(f"s_cselect_b32 {tmp}, 7, 0")
        A(f"s_sub_u32 {reg}, {reg}, {tmp}")
    if stamps:
        A("s_memrealtime s[62:63]")
    stamp("start")
    A(f"s_cmp_ge_u32 s2, {GRID}")
    A("s_cbranch_scc1 L_end")
    A("s_load_dwordx8 s[4:11], s[0:1], 0")
    A("s_load_dwordx4 s[12:15], s[0:1], 32")
    if cpf:
        A("s_getpc_b64 s[58:59]")
        g.label("L_pc")
        A("v_lshlrev_b32 v2, 7, v0")
        A("v_min_u32 v2, L_code_end-L_pc-4, v2")
        A("global_load_dword v63, v2, s[58:59]")
    A("s_memrealtime s[60:61]")
    A("s_and_b32 s36, s2, 7")
    A("s_lshr_b32 s37, s2, 3")
    A("v_and_b32 v1, 63, v0")
    A("v_lshrrev_b32 v2, 6, v0")
    A("v_lshrrev_b32 v3, 3, v1")
    A("v_readfirstlane_b32 s43, v2")
    if rot2 == "xcd":
        A("s_mov_b32 s47, s36")
        mod7("s47")
    else:
        A("s_mov_b32 s47, 0")
    if helpers:
        A(f"s_cmp_ge_u32 s2, {NWG}")
        A("s_cbranch_scc1 L_helper")
    A("s_mul_i32 s38, s37, 37")
    A("s_lshr_b32 s38, s38, 8")
    A("s_mul_i32 s39, s38, 7")
    A("s_sub_u32 s39, s37, s39")
    A("s_lshr_b32 s40, s36, 1")
    A("s_lshl_b32 s40, s40, 2")
    A("s_add_u32 s40, s40, s38")
    A("s_and_b32 s41, s36, 1")
    A("s_mul_i32 s41, s41, 7")
    A("s_add_u32 s41, s41, s39")
    A("s_lshl_b32 s42, s36, 2")
    A("s_add_u32 s42, s42, s38")
    A("v_and_b32 v4, 7, v1")
    A("v_lshl_add_u32 v5, v2, 5, v3")
    A("v_mul_u32_u24 v7, 896, v5")
    A("v_lshrrev_b32 v6, 1, v3")
    A("v_xor_b32 v8, v6, v4")
    A("v_lshl_add_u32 v10, v8, 4, v7")
    A("v_xor_b32 v8, 4, v8")
    A("v_lshl_add_u32 v11, v8, 4, v7")
    A(f"v_add_u32 v11, {7168-1024}, v11")
    A(f"v_add_u32 v12, {2*(7168-1024)}, v10")
    A(f"v_add_u32 v13, {2*(7168-1024)}, v11")
    A("v_lshrrev_b32 v9, 4, v1")
    A("v_and_b32 v37, 15, v1")
    A("v_lshl_add_u32 v5, v2, 4, v9")
    A("v_mul_u32_u24 v7, 3584, v5")
    A("v_lshlrev_b32 v6, 2, v9")
    A("v_xor_b32 v8, v6, v37")
    A("v_lshl_add_u32 v14, v8, 4, v7")
    for i in range(1, 4):
        A(f"v_add_u32 v{14+i}, {i*(14336-1024)}, v14")
    A("s_lshl_b32 s45, s43, 12")
    if rot1 == "none":
        A("s_mov_b32 s46, 0")
    elif rot1 == "g2":
        A("s_add_u32 s46, s38, s39")
        A("s_and_b32 s46, s46, 1")
        A("s_lshl_b32 s46, s46, 2")
    elif rot1 == "full":
        A("s_lshl_b32 s46, s38, 1")
        A("s_add_u32 s46, s46, s39")
        mod7("s46")
    elif rot1 == "g3":
        A("s_add_u32 s46, s38, s39")
        A("s_mul_i32 s44, s46, 86")
        A("s_lshr_b32 s44, s44, 8")
        A("s_mul_i32 s44, s44, 3")
        A("s_sub_u32 s46, s46, s44")
        A("s_mul_i32 s46, s46, 5")
        A("s_lshr_b32 s46, s46, 1")
    elif rot1 == "g4":
        A("s_add_u32 s46, s38, s39")
        A("s_and_b32 s46, s46, 3")
        A("s_mul_i32 s46, s46, 7")
        A("s_lshr_b32 s46, s46, 2")
    if xrot1:
        A("s_add_u32 s46, s46, s47")
        mod7("s46")
    A("s_mul_i32 s44, s40, 114688")
    A("s_lshl_b32 s49, s41, 8")
    A("s_mov_b32 s18, 114688")
    A("s_mov_b32 s19, 0x20000")
    A("s_sub_u32 s22, 1605632, s49")
    A("s_mov_b32 s23, 0x20000")
    A("s_waitcnt lgkmcnt(0)")
    stamp("karg")
    A("s_add_u32 s16, s4, s44")
    A("s_addc_u32 s17, s5, 0")
    A("s_add_u32 s20, s6, s49")
    A("s_addc_u32 s21, s7, 0")

    def item_ops(n):
        ops = []
        if n < 7:
            slot = n % 5
            tag = ("p1", n)
            pre = ["s_lshl_b32 s49, s46, 7", f"s_add_u32 m0, s45, {slot*32768}", f"s_mul_i32 s50, s46, {64*3584}"]
            for i in range(4):
                off = f" offset:{1024*i}" if i else ""
                ops.append((pre if i == 0 else [], tag, f"buffer_load_dwordx4 v{10+i}, s[16:19], s49 offen{off} lds"))
            for i in range(4):
                off = f" offset:{1024*i}" if i else ""
                pre = [f"s_add_u32 m0, s45, {slot*32768+16384}", "s_add_u32 s46, s46, 1", "s_cmp_eq_u32 s46, 7", "s_cselect_b32 s46, 0, s46"]
                ops.append((pre if i == 0 else [], tag, f"buffer_load_dwordx4 v{14+i}, s[20:23], s50 offen{off} lds"))
        else:
            u = n - 7
            slot = [2, 3, 4, 0, 1, 2, 3][u]
            tag = ("w2", u)
            pre = [f"s_bfe_u32 s49, s48, 0x{(3<<16)|(4*u):x}", f"s_mul_i32 s49, s49, {64*896}", f"s_add_u32 m0, s51, {slot*32768}", f"s_add_u32 s50, s49, {32*896}"]
            for i in range(4):
                off = f" offset:{1024*i}" if i else ""
                ops.append((pre if i == 0 else [], tag, f"buffer_load_dwordx4 v{18+i}, s[24:27], s49 offen{off} lds"))
            for i in range(4):
                off = f" offset:{1024*i}" if i else ""
                pre = [f"s_add_u32 m0, s51, {slot*32768+4096}", "s_nop 0"]
                ops.append((pre if i == 0 else [], tag, f"buffer_load_dwordx4 v{18+i}, s[24:27], s50 offen{off} lds"))
        return ops
    def emit_op(op):
        pre, tag, ins = op
        for p in pre: A(p)
        g.vmem(tag, ins)
    def emit_item(n):
        for op in item_ops(n): emit_op(op)

    emit_item(0)
    A("v_mul_u32_u24 v5, 448, v2")
    A("v_add_u32 v5, v5, v3")
    A("v_mul_u32_u24 v7, 896, v5")
    A("v_bfe_u32 v6, v1, 4, 1")
    A("v_lshlrev_b32 v6, 2, v6")
    A("v_xor_b32 v8, v6, v4")
    A("v_lshl_add_u32 v18, v8, 4, v7")
    for i in range(1, 4):
        A(f"v_add_u32 v{18+i}, {i*(7168-1024)}, v18")
    A("s_lshl_b32 s44, s39, 7")
    A("s_add_u32 s24, s8, s44")
    A("s_addc_u32 s25, s9, 0")
    A("s_sub_u32 s26, 1605632, s44")
    A("s_mov_b32 s27, 0x20000")
    A("s_lshl_b32 s51, s43, 13")
    def otab(r):
        if not lead: return list(range(7))
        l2 = 4 + r % 3
        return [r, l2] + [(r + k) % 4 for k in (1, 2, 3)] + [4 + (l2 - 4 + k) % 3 for k in (1, 2)]
    tabs = [sum(o << (4*p) for p, o in enumerate(otab(r))) for r in range(4)]
    A(f"s_mov_b32 s48, 0x{tabs[0]:x}")
    for r in range(1, 4):
        A(f"s_cmp_eq_u32 s38, {r}")
        A(f"s_cselect_b32 s48, 0x{tabs[r]:x}, s48")
    A("s_mul_i32 s44, s47, 0x1111111")
    A("s_add_u32 s48, s48, s44")
    A("s_add_u32 s44, s48, 0x1111111")
    A("s_and_b32 s44, s44, 0x8888888")
    A("s_lshr_b32 s44, s44, 3")
    A("s_mul_i32 s44, s44, 7")
    A("s_sub_u32 s48, s48, s44")
    A("s_mov_b32 s28, s14")
    A("s_mov_b32 s29, s15")
    A(f"s_mov_b32 s30, {FLAG_OFF + 16384}")
    A("s_mov_b32 s31, 0x20000")
    A("s_mov_b32 s32, s10")
    A("s_mov_b32 s33, s11")
    A("s_mov_b32 s34, 1835008")
    A("s_mov_b32 s35, 0x20000")
    A("v_and_b32 v2, 31, v1")
    A("v_lshrrev_b32 v3, 5, v1")
    A("v_bfe_u32 v4, v1, 1, 3")
    A("v_xor_b32 v4, v4, v3")
    A("v_lshlrev_b32 v4, 4, v4")
    A("v_lshl_add_u32 v4, v2, 7, v4")
    A("s_lshr_b32 s52, s43, 1")
    A("s_and_b32 s53, s43, 1")
    A("s_lshl_b32 s44, s52, 13")
    A("v_add_u32 v22, s44, v4")
    for s in range(1, 4):
        A(f"v_xor_b32 v{22+s}, {s<<5}, v22")
    A("v_bfe_u32 v5, v1, 2, 2")
    A("v_lshl_add_u32 v6, v3, 3, v5")
    A("v_lshlrev_b32 v6, 8, v6")
    A("v_and_b32 v7, 3, v1")
    A("v_lshlrev_b32 v7, 3, v7")
    A("v_bfe_u32 v8, v1, 4, 1")
    A("v_lshl_add_u32 v7, v8, 5, v7")
    A("s_lshl_b32 s44, s53, 1")
    A("v_xor_b32 v9, s44, v5")
    A("v_lshl_add_u32 v9, v9, 6, v7")
    A("v_add_u32 v26, v9, v6")
    A("v_add_u32 v26, 16384, v26")
    A("v_xor_b32 v27, 64, v26")
    A("v_lshl_add_u32 v6, v3, 2, v5")
    A("v_lshlrev_b32 v6, 7, v6")
    A("v_lshrrev_b32 v9, 1, v5")
    A("v_xor_b32 v9, s52, v9")
    A("v_lshl_add_u32 v9, v9, 6, v7")
    A("v_add3_u32 v28, v9, v6, s51")
    A("v_xor_b32 v29, 64, v28")
    A("v_add_u32 v40, 0x10000, v28")
    A("v_add_u32 v41, 0x10000, v29")
    A("v_add_u32 v42, 0x20000, v28")
    A("v_add_u32 v43, 0x20000, v29")
    A("v_lshlrev_b32 v30, 4, v1")
    A("s_lshl_b32 s44, s53, 10")
    A("v_add_u32 v44, s44, v30")
    A("v_xor_b32 v45, 0x400, v44")
    A("v_mov_b32 v36, 0")
    A("s_or_b32 s44, s2, s43")
    A("s_cmp_lg_u32 s44, 0")
    A("s_cbranch_scc1 L_noepoch")
    A("s_or_b32 s60, s60, 1")
    A("v_mov_b32 v46, s60")
    A("v_mov_b32 v47, s61")
    A("s_mov_b64 exec, 1")
    A("global_store_dwordx2 v36, v[46:47], s[12:13] sc0 sc1")
    A("s_mov_b64 exec, -1")
    A("s_waitcnt vmcnt(0)")
    g.label("L_noepoch")
    for n in range(1, D): emit_item(n)
    A("s_lshl_b32 s44, s40, 1")
    A("s_add_u32 s44, s44, s52")
    A("s_mul_i32 s54, s44, 112")
    A("s_lshl_b32 s55, s41, 1")
    A("s_add_u32 s55, s55, s53")
    A("s_lshl_b32 s56, s55, 2")
    A("s_add_u32 s54, s54, s56")
    A("s_lshl_b32 s54, s54, 11")
    A("s_mul_i32 s56, s55, 37")
    A("s_lshr_b32 s56, s56, 8")
    A("s_mul_i32 s57, s56, 7")
    A("s_sub_u32 s57, s55, s57")
    A("s_lshl_b32 s44, s44, 2")
    A("s_add_u32 s44, s44, s56")
    A("s_lshl_b32 s44, s44, 7")
    A("s_lshl_b32 s57, s57, 2")
    A("s_add_u32 s55, s44, s57")
    A(f"s_add_u32 s55, s55, {FLAG_OFF}")
    A("s_add_u32 s4, s14, s55")
    A("s_addc_u32 s5, s15, 0")
    A("s_mul_i32 s56, s42, 112")
    A("s_mul_i32 s57, s43, 28")
    A("s_add_u32 s56, s56, s57")
    A("s_lshl_b32 s56, s56, 11")
    A("s_lshl_b32 s57, s42, 2")
    A("s_add_u32 s57, s57, s43")
    A("s_lshl_b32 s57, s57, 7")
    A(f"s_add_u32 s57, s57, {FLAG_OFF}")
    A("s_add_u32 s6, s14, s57")
    A("s_addc_u32 s7, s15, 0")
    A("s_lshl_b32 s44, s42, 6")
    A("s_lshl_b32 s58, s53, 5")
    A("s_add_u32 s44, s44, s58")
    A("s_mul_i32 s44, s44, 896")
    A("s_lshl_b32 s58, s39, 7")
    A("s_add_u32 s44, s44, s58")
    A("s_lshl_b32 s58, s52, 6")
    A("s_add_u32 s99, s44, s58")
    A("v_mul_u32_u24 v38, 896, v2")
    A("v_lshl_add_u32 v38, v3, 4, v38")
    A("v_add_u32 v48, s51, v30")
    A("v_add_u32 v49, 0x10000, v48")
    A("v_xor_b32 v50, 0x2000, v48")
    A("v_xor_b32 v51, 0x4000, v49")
    A("v_xor_b32 v52, 0x6000, v49")

    ACC = 64
    def acc(i, j):
        b = ACC + (i*2+j)*16
        return f"v[{b}:{b+15}]"
    FB = 128
    def xf(buf, j): return FB + buf*16 + j*4
    def wf(buf, i): return FB + buf*16 + 8 + i*4

    state = {"base": 0}
    def chunk_sync(t):
        g.wait_vm(("p1", t))
        if g.lg:
            A("s_waitcnt lgkmcnt(0)"); g.lg = []
        A("s_barrier")
        if t in (0, 3, 6): stamp(f"c{t}")
        want = ((t % 5) // 2) * 65536
        if want != state["base"]:
            d = (want - state["base"]) & 0xffffffff
            for r in range(22, 28):
                A(f"v_add_u32 v{r}, 0x{d:x}, v{r}")
            state["base"] = want
    def reads(n):
        t, s = divmod(n, 4)
        so = (t % 5)*32768 - state["base"]
        buf = n % 2
        def w(i):
            b = wf(buf, i)
            return [(("w", n, i), f"ds_read_b64_tr_b16 v[{b+2*jj}:{b+2*jj+1}], v{26+i} offset:{so + s*4096 + jj*1024}") for jj in range(2)]
        def x(j):
            b = xf(buf, j)
            return [(("x", n, j), f"ds_read_b128 v[{b}:{b+3}], v{22+s} offset:{so + j*4096}")]
        return w(0) + x(0) + x(1) + w(1)
    next_item = D
    ops = []
    chunk_sync(0)
    for tag, ins in reads(0): g.ds(tag, ins)
    for n in range(28):
        t, s = divmod(n, 4)
        rd = []
        if n + 1 < 28:
            if (n + 1) % 4 == 0:
                chunk_sync((n + 1)//4)
            rd = reads(n + 1)
        tt = min((n + 1)//4, 6)
        rate = 3 if n >= fast else 2
        if n == 12:
            g.vmem("epoch", "global_load_dwordx2 v[32:33], v36, s[12:13] sc0 sc1")
        buf = n % 2
        order = [(0, 0), (0, 1), (1, 0), (1, 1)]
        for k, (i, j) in enumerate(order):
            if k == 0:
                g.wait_lg(("x", n, 0))
                for _ in range(3):
                    if rd: tag, ins = rd.pop(0); g.ds(tag, ins)
            elif k == 1:
                g.wait_lg(("x", n, 1))
            elif k == 2:
                g.wait_lg(("w", n, 1))
            c = "0" if n == 0 else acc(i, j)
            a_, b_ = wf(buf, i), xf(buf, j)
            A(f"v_mfma_f32_32x32x16_bf16 {acc(i,j)}, v[{a_}:{a_+3}], v[{b_}:{b_+3}], {c}")
            if k == 0:
                while rd: tag, ins = rd.pop(0); g.ds(tag, ins)
            if 1 <= k <= rate:
                if not ops and next_item - 5 <= tt - 1 and (next_item <= 6 or (next_item == 7 and n >= LEAD)):
                    ops = item_ops(next_item); next_item += 1
                if ops: emit_op(ops.pop(0))
    while ops: emit_op(ops.pop(0))
    stamp("p1end")
    A("s_add_u32 s44, s54, 4096")
    A("s_nop 7")
    PK = 160
    n = 0
    for i in range(2):
        for j in range(2):
            if (i, j) == (1, 1): A("s_nop 3")
            for half in range(2):
                src = ACC + (i*2+j)*16 + half*8
                dst = PK + n*4
                for e in range(4):
                    A(f"v_cvt_pk_bf16_f32 v{dst+e}, v{src+2*e}, v{src+2*e+1}")
                for e in range(4):
                    A(f"v_pk_max_i16 v{dst+e}, v{dst+e}, 0")
                off = (2*i+half)*2048 + j*1024
                sreg = "s54" if off < 4096 else "s44"
                o = off % 4096
                g.vmem("hst", f"buffer_store_dwordx4 v[{dst}:{dst+3}], v30, s[28:31], {sreg} offen" + (f" offset:{o}" if o else "") + " sc1")
                n += 1
    stamp("hst_iss")
    A("s_barrier")
    emit_item(next_item); next_item += 1
    g.wait_vm("epoch")
    A("v_cmp_ne_u32 vcc, 0, v32")
    A("s_cbranch_vccnz L_epoch_ok")
    A("s_mov_b32 s44, 0")
    g.label("L_epoch_spin")
    A("global_load_dwordx2 v[32:33], v36, s[12:13] sc0 sc1")
    A("s_waitcnt vmcnt(0)")
    A("s_add_u32 s44, s44, 1")
    A("s_cmp_ge_u32 s44, 0x40000")
    A("s_cbranch_scc1 L_epoch_ok")
    A("v_cmp_eq_u32 vcc, 0, v32")
    A("s_cbranch_vccnz L_epoch_spin")
    g.label("L_epoch_ok")
    A("v_readfirstlane_b32 s60, v32")
    A("v_readfirstlane_b32 s61, v32")
    A("s_nop 4")
    g.wait_vm("hst")
    stamp("hst_done")
    A("s_atomic_swap s60, s[4:5], 0")
    def w2addr(u, i):
        slot = [2, 3, 4, 0, 1, 2, 3][u]
        reg = [28, 40, 42][slot // 2] + i
        return reg, (slot % 2)*32768
    def stash(u):
        g.wait_vm(("w2", u))
        for s in range(4):
            for i in range(2):
                reg, so = w2addr(u, i)
                for jj in range(2):
                    a = (u*4+s)*8 + i*4 + jj*2
                    g.ds(("stash", u), f"ds_read_b64_tr_b16 a[{a}:{a+1}], v{reg} offset:{so + s*2048 + jj*1024}")
    stashed = set()
    def pre_item(n):
        if n >= 12:
            if (n - 12) not in stashed:
                stash(n - 12); stashed.add(n - 12)
            g.wait_lg(("stash", n - 12))
    stash(0); stashed.add(0)
    while next_item <= PP:
        if next_item == 11 and 1 not in stashed:
            stash(1); stashed.add(1)
        pre_item(next_item)
        if next_item == PP:
            A("s_load_dwordx8 s[16:23], s[6:7], 0 glc")
        emit_item(next_item); next_item += 1
    if 1 not in stashed:
        stash(1); stashed.add(1)
    stamp("w2iss")
    A("s_mov_b32 s44, 0")
    A("s_branch L_poll_chk")
    g.label("L_poll")
    A("s_load_dwordx8 s[16:23], s[6:7], 0 glc")
    A("s_add_u32 s44, s44, 1")
    A("s_cmp_ge_u32 s44, 0x80000")
    A("s_cbranch_scc1 L_flags_to")
    g.label("L_poll_chk")
    A("s_waitcnt lgkmcnt(0)")
    g.lg = []
    A("s_cmp_lg_u64 s[16:17], s[60:61]")
    A("s_cbranch_scc1 L_poll")
    A("s_cmp_lg_u64 s[18:19], s[60:61]")
    A("s_cbranch_scc1 L_poll")
    A("s_cmp_lg_u64 s[20:21], s[60:61]")
    A("s_cbranch_scc1 L_poll")
    A("s_cmp_lg_u32 s22, s60")
    A("s_cbranch_scc1 L_poll")
    g.label("L_flags_to")
    A("s_waitcnt lgkmcnt(0)")
    g.label("L_flags_ok")
    stamp("flags")
    HB = 128; HN = 12
    WB = 224; WN = 4
    assert HD < HN
    def hload(step):
        u, s = divmod(step, 4)
        if s == 0:
            A(f"s_bfe_u32 s58, s48, 0x{(3<<16)|(4*u):x}")
            A("s_lshl_b32 s58, s58, 13")
            A("s_add_u32 s58, s58, s56")
            A("s_add_u32 s59, s58, 4096")
        res = []
        for j in range(2):
            b = HB + (step % HN)*8 + j*4
            off = s*2048
            sreg = "s58" if off < 4096 else "s59"
            o = off % 4096
            res.append((("h", step, j), f"buffer_load_dwordx4 v[{b}:{b+3}], v{44+j}, s[28:31], {sreg} offen" + (f" offset:{o}" if o else "") + " sc1"))
        return res
    def w2reads(step):
        u, s = divmod(step, 4)
        if u < 2: return
        if s == 0: g.wait_vm(("w2", u))
        for i in range(2):
            reg, so = w2addr(u, i)
            for jj in range(2):
                b = WB + (step % WN)*8 + i*4 + jj*2
                g.ds(("wf", step), f"ds_read_b64_tr_b16 v[{b}:{b+1}], v{reg} offset:{so + s*2048 + jj*1024}")
    for st in range(HD):
        for tag, ins in hload(st): g.vmem(tag, ins)
    g.wait_lg(("stash", 1))
    rest = []
    while next_item <= 13:
        rest += item_ops(next_item); next_item += 1
    WD = 2
    for st in range(WD): w2reads(st)
    for st in range(28):
        u, s = divmod(st, 4)
        if st + WD < 28: w2reads(st + WD)
        g.wait_vm(("h", st, 0))
        if st == 0: stamp("h0")
        g.wait_lg(("wf", st))
        lds = hload(st + HD) if st + HD < 28 else []
        order = [(0, 0), (1, 0), (0, 1), (1, 1)]
        if st == 27: order = [(1, 0), (0, 1), (1, 1), (0, 0)]
        for k, (i, j) in enumerate(order):
            if j == 1: g.wait_vm(("h", st, 1))
            c = "0" if st == 0 else acc(i, j)
            hb = HB + (st % HN)*8 + j*4
            if u < 2:
                a0 = (u*4+s)*8 + i*4
                wop = f"a[{a0}:{a0+3}]"
            else:
                b = WB + (st % WN)*8 + i*4
                wop = f"v[{b}:{b+3}]"
            A(f"v_mfma_f32_32x32x16_bf16 {acc(i,j)}, {wop}, v[{hb}:{hb+3}], {c}")
            if k % 2 == 0 and lds:
                tag, ins = lds.pop(0)
                g.vmem(tag, ins)
            if k % 2 == 1 and rest:
                emit_op(rest.pop(0))
    stamp("p2end")
    A("s_nop 7")
    A("s_nop 1")
    for q in (2, 1, 3):
        for p in range(4):
            b = ACC + q*16 + p*4
            A(f"ds_write_b128 v{48 + q//2}, v[{b}:{b+3}] offset:{(q%2)*32768 + p*1024}")
    A("s_waitcnt lgkmcnt(0)")
    A("s_barrier")
    g.lg = []
    for p in range(4):
        for q in range(1, 4):
            b = 128 + (q-1)*16 + p*4
            g.ds(("red", p), f"ds_read_b128 v[{b}:{b+3}], v{49+q} offset:{(q%2)*32768 + p*1024}")
    for p in range(4):
        g.wait_lg(("red", p))
        for r in range(4*p, 4*p+4):
            A(f"v_add_f32 v{128+r}, v{128+r}, v{144+r}")
            A(f"v_add_f32 v{ACC+r}, v{ACC+r}, v{160+r}")
        for r in range(4*p, 4*p+4):
            A(f"v_add_f32 v{ACC+r}, v{ACC+r}, v{128+r}")
        A(f"v_cvt_pk_bf16_f32 v{176+2*p}, v{ACC+4*p}, v{ACC+4*p+1}")
        A(f"v_cvt_pk_bf16_f32 v{177+2*p}, v{ACC+4*p+2}, v{ACC+4*p+3}")
        if p % 2 == 1:
            b = 176 + 2*(p-1)
            A("s_nop 1")
            A(f"v_permlane32_swap_b32 v{b}, v{b+2}")
            A(f"v_permlane32_swap_b32 v{b+1}, v{b+3}")
            A(f"buffer_store_dwordx4 v[{b}:{b+3}], v38, s[32:35], s99 offen" + (" offset:32" if p == 3 else "") + outpol)
    if probe is not None:
        stamp("st_iss")
        A("s_waitcnt vmcnt(0)")
        stamp("st_done")
        A("s_waitcnt lgkmcnt(0)")
        A("s_add_u32 s96, s96, 2000")
        g.label("L_dly")
        A("s_memrealtime s[100:101]")
        A("s_waitcnt lgkmcnt(0)")
        A("s_sub_u32 s100, s100, s96")
        A("s_cmp_lt_i32 s100, 0")
        A("s_cbranch_scc1 L_dly")
    def dump_stamps():
        A("s_memrealtime s[94:95]")
        A("s_waitcnt lgkmcnt(0)")
        A("v_lshrrev_b32 v2, 6, v0")
        A("s_lshl_b32 s44, s2, 2")
        A("v_add_u32 v2, s44, v2")
        A("v_lshlrev_b32 v2, 8, v2")
        A(f"v_add_u32 v2, 0x{STAMP_OFF:x}, v2")
        A("s_mov_b64 exec, 1")
        regs = [62] + [64+2*i for i in range(g.nst)] + [94]
        for i, r in enumerate(regs):
            A(f"v_mov_b32 v4, s{r}")
            A(f"v_mov_b32 v5, s{r+1}")
            A(f"global_store_dwordx2 v2, v[4:5], s[14:15] offset:{8*i}")
            A("s_waitcnt vmcnt(0)")
        A("s_getreg_b32 s44, hwreg(HW_REG_XCC_ID)")
        A("v_mov_b32 v4, s44")
        A("v_mov_b32 v5, 0")
        A(f"global_store_dwordx2 v2, v[4:5], s[14:15] offset:248")
    if stamps:
        stamp("st_iss")
        A("s_waitcnt vmcnt(0)")
        stamp("st_done")
        dump_stamps()
    g.label("L_end")
    A("s_endpgm")
    if helpers:
        g.label("L_helper")
        A("s_sub_u32 s38, s37, 28")
        A(f"s_mul_i32 s38, s38, {448*896}")
        A(f"s_mul_i32 s39, s43, {112*128}")
        A("s_add_u32 s38, s38, s39")
        A("v_lshlrev_b32 v4, 7, v1")
        A("v_add_u32 v5, 0x2000, v4")
        A(f"v_min_u32 v5, {111*128}, v5")
        A("s_mov_b32 s26, 1605632")
        A("s_mov_b32 s27, 0x20000")
        A("s_waitcnt lgkmcnt(0)")
        A("s_mov_b32 s24, s8")
        A("s_mov_b32 s25, s9")
        for u in range(7):
            A(f"s_mul_i32 s49, s47, {64*896}")
            A("s_add_u32 s49, s49, s38")
            A("buffer_load_dword v6, v4, s[24:27], s49 offen")
            A("buffer_load_dword v6, v5, s[24:27], s49 offen")
            A("s_add_u32 s47, s47, 1")
            A("s_cmp_eq_u32 s47, 7")
            A("s_cselect_b32 s47, 0, s47")
            if stamps:
                A(f"s_memtime s[{66+2*u}:{67+2*u}]")
        if stamps:
            A("s_waitcnt vmcnt(0)")
            for u in range(7, g.nst - 1):
                A(f"s_memtime s[{66+2*u}:{67+2*u}]")
            dump_stamps()
        A("s_endpgm")
    g.label("L_code_end")
    hdr = HEADER_COMMENTS + f"; @launch grid=({GRID},1,1) block=(256,1,1) lds=163840\n"
    hdr += f'''.amdgcn_target "amdgcn-amd-amdhsa--gfx950"
.text
.globl {KNAME}
.p2align 8
.type {KNAME},@function
{KNAME}:
'''
    ftr = f'''
.section .rodata,"a"
.p2align 6
.amdhsa_kernel {KNAME}
  .amdhsa_next_free_vgpr 320
  .amdhsa_next_free_sgpr 102
  .amdhsa_accum_offset 256
  .amdhsa_group_segment_fixed_size 0
  .amdhsa_kernarg_size 48
  .amdhsa_user_sgpr_count 2
  .amdhsa_user_sgpr_kernarg_segment_ptr 1
  .amdhsa_system_sgpr_workgroup_id_x 1
.end_amdhsa_kernel
'''
    return hdr + "\n".join(g.L) + ftr, names

if __name__ == "__main__":
    ap = argparse.ArgumentParser()
    ap.add_argument("-o", default="k5.s")
    ap.add_argument("--HD", type=int, default=8)
    ap.add_argument("--stamps", action="store_true")
    ap.add_argument("--rot1", default="g3")
    ap.add_argument("--probe", type=int, default=None)
    for k, d in (("lead", 1), ("LEAD", 18), ("fast", 8), ("PP", 12), ("xrot1", 0), ("helpers", 0)):
        ap.add_argument("--" + k, type=int, default=d)
    a = ap.parse_args()
    s, n = gen(stamps=a.stamps, rot1=a.rot1, HD=a.HD, probe=a.probe, lead=a.lead, LEAD=a.LEAD, fast=a.fast, PP=a.PP, xrot1=a.xrot1, helpers=a.helpers)
    open(a.o, "w").write(s)
    print("written", a.o, "names", ",".join(n), "lines", s.count("\n"))
```

```python
import sys, argparse
sys.path.insert(0, "gen")
from k1 import G, KNAME, HEADER_COMMENTS

def gen(D=2, stamps=False, rot1="g3", rot2="xcd", HD=8, probe=None, helpers=0, outpol="", cpf=1, lead=1, LEAD=18, fast=8, PP=12, xrot1=0, order1="0,1,2,3,4,5a,6a,5b,6b", tail=1, hdelay=0, pre2=0, touch=0):
    g = G(); A = g.A
    NWG = 224
    GRID = 256 if helpers else 224
    FLAG_OFF = 0x800000
    STAMP_OFF = 0x8000000
    g.np = 0
    names = []
    def stamp(name):
        names.append(name)
        if probe is not None:
            if g.np == probe:
                A("s_memrealtime s[96:97]")
            g.np += 1
        if stamps:
            A(f"s_memrealtime s[{64+2*g.nst}:{65+2*g.nst}]")
            g.nst += 1
            assert g.nst <= 15
    def mod7(reg, tmp="s44"):
        A(f"s_cmp_ge_u32 {reg}, 7")
        A(f"s_cselect_b32 {tmp}, 7, 0")
        A(f"s_sub_u32 {reg}, {reg}, {tmp}")
    if stamps:
        A("s_memrealtime s[62:63]")
    stamp("start")
    A(f"s_cmp_ge_u32 s2, {GRID}")
    A("s_cbranch_scc1 L_end")
    A("s_load_dwordx8 s[4:11], s[0:1], 0")
    A("s_load_dwordx4 s[12:15], s[0:1], 32")
    if cpf:
        A("s_getpc_b64 s[58:59]")
        g.label("L_pc")
        A("v_lshlrev_b32 v2, 7, v0")
        A("v_min_u32 v2, L_code_end-L_pc-4, v2")
        A("global_load_dword v63, v2, s[58:59]")
    A("s_memrealtime s[60:61]")
    A("s_and_b32 s36, s2, 7")
    A("s_lshr_b32 s37, s2, 3")
    A("v_and_b32 v1, 63, v0")
    A("v_lshrrev_b32 v2, 6, v0")
    A("v_lshrrev_b32 v3, 3, v1")
    A("v_readfirstlane_b32 s43, v2")
    if rot2 == "xcd":
        A("s_mov_b32 s47, s36")
        mod7("s47")
    else:
        A("s_mov_b32 s47, 0")
    if helpers:
        A(f"s_cmp_ge_u32 s2, {NWG}")
        A("s_cbranch_scc1 L_helper")
    A("s_mul_i32 s38, s37, 37")
    A("s_lshr_b32 s38, s38, 8")
    A("s_mul_i32 s39, s38, 7")
    A("s_sub_u32 s39, s37, s39")
    A("s_lshr_b32 s40, s36, 1")
    A("s_lshl_b32 s40, s40, 2")
    A("s_add_u32 s40, s40, s38")
    A("s_and_b32 s41, s36, 1")
    A("s_mul_i32 s41, s41, 7")
    A("s_add_u32 s41, s41, s39")
    A("s_lshl_b32 s42, s36, 2")
    A("s_add_u32 s42, s42, s38")
    A("v_and_b32 v4, 7, v1")
    A("v_lshl_add_u32 v5, v2, 5, v3")
    A("v_mul_u32_u24 v7, 896, v5")
    A("v_lshrrev_b32 v6, 1, v3")
    A("v_xor_b32 v8, v6, v4")
    A("v_lshl_add_u32 v10, v8, 4, v7")
    A("v_xor_b32 v8, 4, v8")
    A("v_lshl_add_u32 v11, v8, 4, v7")
    A(f"v_add_u32 v11, {7168-1024}, v11")
    A(f"v_add_u32 v12, {2*(7168-1024)}, v10")
    A(f"v_add_u32 v13, {2*(7168-1024)}, v11")
    A("v_lshrrev_b32 v9, 4, v1")
    A("v_and_b32 v37, 15, v1")
    A("v_lshl_add_u32 v5, v2, 4, v9")
    A("v_mul_u32_u24 v7, 3584, v5")
    A("v_lshlrev_b32 v6, 2, v9")
    A("v_xor_b32 v8, v6, v37")
    A("v_lshl_add_u32 v14, v8, 4, v7")
    for i in range(1, 4):
        A(f"v_add_u32 v{14+i}, {i*(14336-1024)}, v14")
    A("s_lshl_b32 s45, s43, 12")
    if rot1 == "none":
        A("s_mov_b32 s46, 0")
    elif rot1 == "g2":
        A("s_add_u32 s46, s38, s39")
        A("s_and_b32 s46, s46, 1")
        A("s_lshl_b32 s46, s46, 2")
    elif rot1 == "full":
        A("s_lshl_b32 s46, s38, 1")
        A("s_add_u32 s46, s46, s39")
        mod7("s46")
    elif rot1 == "g3":
        A("s_add_u32 s46, s38, s39")
        A("s_mul_i32 s44, s46, 86")
        A("s_lshr_b32 s44, s44, 8")
        A("s_mul_i32 s44, s44, 3")
        A("s_sub_u32 s46, s46, s44")
        A("s_mul_i32 s46, s46, 5")
        A("s_lshr_b32 s46, s46, 1")
    elif rot1 == "g4b":
        A("s_add_u32 s46, s38, s39")
        A("s_and_b32 s46, s46, 3")
        A("s_lshl_b32 s46, s46, 1")
    elif rot1 == "g4":
        A("s_add_u32 s46, s38, s39")
        A("s_and_b32 s46, s46, 3")
        A("s_mul_i32 s46, s46, 7")
        A("s_lshr_b32 s46, s46, 2")
    if xrot1:
        A("s_add_u32 s46, s46, s47")
        mod7("s46")
    A("s_mul_i32 s44, s40, 114688")
    A("s_lshl_b32 s49, s41, 8")
    A("s_mov_b32 s18, 114688")
    A("s_mov_b32 s19, 0x20000")
    A("s_sub_u32 s22, 1605632, s49")
    A("s_mov_b32 s23, 0x20000")
    A("s_waitcnt lgkmcnt(0)")
    stamp("karg")
    A("s_add_u32 s16, s4, s44")
    A("s_addc_u32 s17, s5, 0")
    A("s_add_u32 s20, s6, s49")
    A("s_addc_u32 s21, s7, 0")

    def item_ops(n):
        ops = []
        if n < 7:
            slot = n % 5
            tag = ("p1", n)
            pre = ["s_lshl_b32 s49, s46, 7", f"s_add_u32 m0, s45, {slot*32768}", f"s_mul_i32 s50, s46, {64*3584}"]
            for i in range(4):
                off = f" offset:{1024*i}" if i else ""
                ops.append((pre if i == 0 else [], tag, f"buffer_load_dwordx4 v{10+i}, s[16:19], s49 offen{off} lds"))
            for i in range(4):
                off = f" offset:{1024*i}" if i else ""
                pre = [f"s_add_u32 m0, s45, {slot*32768+16384}", "s_add_u32 s46, s46, 1", "s_cmp_eq_u32 s46, 7", "s_cselect_b32 s46, 0, s46"]
                ops.append((pre if i == 0 else [], tag, f"buffer_load_dwordx4 v{14+i}, s[20:23], s50 offen{off} lds"))
        else:
            u = n - 7
            slot = [2, 3, 4, 0, 1, 2, 3][u]
            tag = ("w2", u)
            pre = [f"s_bfe_u32 s49, s48, 0x{(3<<16)|(4*u):x}", f"s_mul_i32 s49, s49, {64*896}", f"s_add_u32 m0, s51, {slot*32768}", f"s_add_u32 s50, s49, {32*896}"]
            for i in range(4):
                off = f" offset:{1024*i}" if i else ""
                ops.append((pre if i == 0 else [], tag, f"buffer_load_dwordx4 v{18+i}, s[24:27], s49 offen{off} lds"))
            for i in range(4):
                off = f" offset:{1024*i}" if i else ""
                pre = [f"s_add_u32 m0, s51, {slot*32768+4096}", "s_nop 0"]
                ops.append((pre if i == 0 else [], tag, f"buffer_load_dwordx4 v{18+i}, s[24:27], s50 offen{off} lds"))
        return ops
    def emit_op(op):
        pre, tag, ins = op
        for p in pre: A(p)
        g.vmem(tag, ins)
    def emit_item(n):
        for op in item_ops(n): emit_op(op)

    emit_item(0)
    A("v_mul_u32_u24 v5, 448, v2")
    A("v_add_u32 v5, v5, v3")
    A("v_mul_u32_u24 v7, 896, v5")
    A("v_bfe_u32 v6, v1, 4, 1")
    A("v_lshlrev_b32 v6, 2, v6")
    A("v_xor_b32 v8, v6, v4")
    A("v_lshl_add_u32 v18, v8, 4, v7")
    for i in range(1, 4):
        A(f"v_add_u32 v{18+i}, {i*(7168-1024)}, v18")
    A("s_lshl_b32 s44, s39, 7")
    A("s_add_u32 s24, s8, s44")
    A("s_addc_u32 s25, s9, 0")
    A("s_sub_u32 s26, 1605632, s44")
    A("s_mov_b32 s27, 0x20000")
    A("s_lshl_b32 s51, s43, 13")
    def otab(r):
        if not lead: return list(range(7))
        l2 = 4 + r % 3
        return [r, l2] + [(r + k) % 4 for k in (1, 2, 3)] + [4 + (l2 - 4 + k) % 3 for k in (1, 2)]
    tabs = [sum(o << (4*p) for p, o in enumerate(otab(r))) for r in range(4)]
    A(f"s_mov_b32 s48, 0x{tabs[0]:x}")
    for r in range(1, 4):
        A(f"s_cmp_eq_u32 s38, {r}")
        A(f"s_cselect_b32 s48, 0x{tabs[r]:x}, s48")
    A("s_mul_i32 s44, s47, 0x1111111")
    A("s_add_u32 s48, s48, s44")
    A("s_add_u32 s44, s48, 0x1111111")
    A("s_and_b32 s44, s44, 0x8888888")
    A("s_lshr_b32 s44, s44, 3")
    A("s_mul_i32 s44, s44, 7")
    A("s_sub_u32 s48, s48, s44")
    A("s_mov_b32 s28, s14")
    A("s_mov_b32 s29, s15")
    A(f"s_mov_b32 s30, {FLAG_OFF + 16384}")
    A("s_mov_b32 s31, 0x20000")
    A("s_mov_b32 s32, s10")
    A("s_mov_b32 s33, s11")
    A("s_mov_b32 s34, 1835008")
    A("s_mov_b32 s35, 0x20000")
    A("v_and_b32 v2, 31, v1")
    A("v_lshrrev_b32 v3, 5, v1")
    A("v_bfe_u32 v4, v1, 1, 3")
    A("v_xor_b32 v4, v4, v3")
    A("v_lshlrev_b32 v4, 4, v4")
    A("v_lshl_add_u32 v4, v2, 7, v4")
    A("s_lshr_b32 s52, s43, 1")
    A("s_and_b32 s53, s43, 1")
    A("s_lshl_b32 s44, s52, 13")
    A("v_add_u32 v22, s44, v4")
    for s in range(1, 4):
        A(f"v_xor_b32 v{22+s}, {s<<5}, v22")
    A("v_bfe_u32 v5, v1, 2, 2")
    A("v_lshl_add_u32 v6, v3, 3, v5")
    A("v_lshlrev_b32 v6, 8, v6")
    A("v_and_b32 v7, 3, v1")
    A("v_lshlrev_b32 v7, 3, v7")
    A("v_bfe_u32 v8, v1, 4, 1")
    A("v_lshl_add_u32 v7, v8, 5, v7")
    A("s_lshl_b32 s44, s53, 1")
    A("v_xor_b32 v9, s44, v5")
    A("v_lshl_add_u32 v9, v9, 6, v7")
    A("v_add_u32 v26, v9, v6")
    A("v_add_u32 v26, 16384, v26")
    A("v_xor_b32 v27, 64, v26")
    A("v_lshl_add_u32 v6, v3, 2, v5")
    A("v_lshlrev_b32 v6, 7, v6")
    A("v_lshrrev_b32 v9, 1, v5")
    A("v_xor_b32 v9, s52, v9")
    A("v_lshl_add_u32 v9, v9, 6, v7")
    A("v_add3_u32 v28, v9, v6, s51")
    A("v_xor_b32 v29, 64, v28")
    A("v_add_u32 v40, 0x10000, v28")
    A("v_add_u32 v41, 0x10000, v29")
    A("v_add_u32 v42, 0x20000, v28")
    A("v_add_u32 v43, 0x20000, v29")
    A("v_lshlrev_b32 v30, 4, v1")
    A("s_lshl_b32 s44, s53, 10")
    A("v_add_u32 v44, s44, v30")
    A("v_xor_b32 v45, 0x400, v44")
    A("v_mov_b32 v36, 0")
    A("s_or_b32 s44, s2, s43")
    A("s_cmp_lg_u32 s44, 0")
    A("s_cbranch_scc1 L_noepoch")
    A("s_or_b32 s60, s60, 1")
    A("v_mov_b32 v46, s60")
    A("v_mov_b32 v47, s61")
    A("s_mov_b64 exec, 1")
    A("global_store_dwordx2 v36, v[46:47], s[12:13] sc0 sc1")
    A("s_mov_b64 exec, -1")
    A("s_waitcnt vmcnt(0)")
    g.label("L_noepoch")
    for n in range(1, D): emit_item(n)
    A("s_lshl_b32 s44, s40, 1")
    A("s_add_u32 s44, s44, s52")
    A("s_mul_i32 s54, s44, 112")
    A("s_lshl_b32 s55, s41, 1")
    A("s_add_u32 s55, s55, s53")
    A("s_lshl_b32 s56, s55, 2")
    A("s_add_u32 s54, s54, s56")
    A("s_lshl_b32 s54, s54, 11")
    A("s_mul_i32 s56, s55, 37")
    A("s_lshr_b32 s56, s56, 8")
    A("s_mul_i32 s57, s56, 7")
    A("s_sub_u32 s57, s55, s57")
    A("s_lshl_b32 s44, s44, 2")
    A("s_add_u32 s44, s44, s56")
    A("s_lshl_b32 s44, s44, 7")
    A("s_lshl_b32 s57, s57, 2")
    A("s_add_u32 s55, s44, s57")
    A(f"s_add_u32 s55, s55, {FLAG_OFF}")
    A("s_add_u32 s4, s14, s55")
    A("s_addc_u32 s5, s15, 0")
    A("s_mul_i32 s56, s42, 112")
    A("s_mul_i32 s57, s43, 28")
    A("s_add_u32 s56, s56, s57")
    A("s_lshl_b32 s56, s56, 11")
    A("s_lshl_b32 s57, s42, 2")
    A("s_add_u32 s57, s57, s43")
    A("s_lshl_b32 s57, s57, 7")
    A(f"s_add_u32 s57, s57, {FLAG_OFF}")
    A("s_add_u32 s6, s14, s57")
    A("s_addc_u32 s7, s15, 0")
    A("s_lshl_b32 s44, s42, 6")
    A("s_lshl_b32 s58, s53, 5")
    A("s_add_u32 s44, s44, s58")
    A("s_mul_i32 s44, s44, 896")
    A("s_lshl_b32 s58, s39, 7")
    A("s_add_u32 s44, s44, s58")
    A("s_lshl_b32 s58, s52, 6")
    A("s_add_u32 s99, s44, s58")
    A("v_mul_u32_u24 v38, 896, v2")
    A("v_lshl_add_u32 v38, v3, 4, v38")
    A("v_add_u32 v48, s51, v30")
    A("v_add_u32 v49, 0x10000, v48")
    A("v_xor_b32 v50, 0x2000, v48")
    A("v_xor_b32 v51, 0x4000, v49")
    A("v_xor_b32 v52, 0x6000, v49")

    ACC = 64
    def acc(i, j):
        b = ACC + (i*2+j)*16
        return f"v[{b}:{b+15}]"
    FB = 128
    PK = 176
    basex = [0]*4; basew = [0]*2
    def rebase(reg, cur, want):
        if cur != want:
            A(f"v_add_u32 v{reg}, 0x{(want - cur) & 0xffffffff:x}, v{reg}")
        return want
    groups = []
    for tok in order1.split(","):
        t = int(tok[0])
        if len(tok) == 1:
            for s_ in range(4): groups.append((t, s_, None))
        else:
            i = "ab".index(tok[1])
            for s_ in (0, 2): groups.append((t, s_, i))
    NGR = len(groups); assert NGR == 28
    synced = set()
    def chunk_sync(t):
        g.wait_vm(("p1", t))
        if g.lg:
            A("s_waitcnt lgkmcnt(0)"); g.lg = []
        A("s_barrier")
        synced.add(t)
        if t in (0, 3, 6): stamp(f"c{t}")
    def plan(n):
        t, s_, i = groups[n]
        slot = t % 5
        want = (slot // 2) * 65536
        so = slot*32768 - want
        b0 = FB + (n % 2)*24
        rd = []; mf = []
        def W(ss, ii, reg):
            basew[ii] = rebase(26+ii, basew[ii], want)
            for jj in range(2):
                rd.append((("f", n, reg), f"ds_read_b64_tr_b16 v[{reg+2*jj}:{reg+2*jj+1}], v{26+ii} offset:{so + ss*4096 + jj*1024}"))
        def X(ss, jj, reg):
            basex[ss] = rebase(22+ss, basex[ss], want)
            rd.append((("f", n, reg), f"ds_read_b128 v[{reg}:{reg+3}], v{22+ss} offset:{so + jj*4096}"))
        if i is None:
            W(s_, 0, b0); X(s_, 0, b0+4); X(s_, 1, b0+8); W(s_, 1, b0+12)
            mf = [(0, 0, b0, b0+4, b0+4), (0, 1, b0, b0+8, b0+8), (1, 1, b0+12, b0+8, b0+12), (1, 0, b0+12, b0+4, b0+12)]
        else:
            W(s_, i, b0); X(s_, 0, b0+4); X(s_, 1, b0+8); W(s_+1, i, b0+12); X(s_+1, 0, b0+16); X(s_+1, 1, b0+20)
            mf = [(i, 0, b0, b0+4, b0+4), (i, 1, b0, b0+8, b0+8), (i, 0, b0+12, b0+16, b0+16), (i, 1, b0+12, b0+20, b0+20)]
        return rd, mf
    def epi_ops(i):
        out = []
        for j in range(2):
            for half in range(2):
                src = ACC + (i*2+j)*16 + half*8
                dst = PK + ((i*2+j)*2+half)*4
                for e in range(4):
                    out.append(("v", f"v_cvt_pk_bf16_f32 v{dst+e}, v{src+2*e}, v{src+2*e+1}"))
                for e in range(4):
                    out.append(("v", f"v_pk_max_i16 v{dst+e}, v{dst+e}, 0"))
                off = (2*i+half)*2048 + j*1024
                sreg = "s54" if off < 4096 else "s98"
                o = off % 4096
                out.append(("m", f"buffer_store_dwordx4 v[{dst}:{dst+3}], v30, s[28:31], {sreg} offen" + (f" offset:{o}" if o else "") + " sc1"))
        return out
    def emit_epi(op):
        if op[0] == "v": A(op[1])
        else: g.vmem("hst", op[1])
    A("s_add_u32 s98, s54, 4096")
    if touch:
        A("s_mov_b64 exec, 1")
        g.vmem("touch", "buffer_load_dword v60, v36, s[24:27], 0 offen")
        g.vmem("touch", "buffer_load_dword v60, v36, s[28:31], s54 offen sc1")
        g.vmem("touch", "buffer_load_dword v60, v36, s[28:31], s56 offen sc1")
        g.vmem("touch", "buffer_load_dword v60, v36, s[32:35], s99 offen")
        A("s_mov_b64 exec, -1")
        A("s_load_dword s97, s[6:7], 0x40 glc")
    last_i0 = max(n for n, (t, s_, i) in enumerate(groups) if i in (None, 0))
    last_read = {t: max(n for n, gr in enumerate(groups) if gr[0] == t) for t in range(7)}
    next_item = D
    ops = []
    epi0 = []
    free_chunks = set()
    started = set()
    chunk_sync(0)
    rd, mf = plan(0)
    for tag, ins in rd: g.ds(tag, ins)
    for n in range(NGR):
        rdn = []; mfn = None
        if n + 1 < NGR:
            tn = groups[n+1][0]
            if tn not in synced:
                chunk_sync(tn)
                for t in range(7):
                    if last_read[t] <= n: free_chunks.add(t)
            rdn, mfn = plan(n + 1)
        rate = 3 if n >= fast else 2
        if n == 12:
            g.vmem("epoch", "global_load_dwordx2 v[32:33], v36, s[12:13] sc0 sc1")
        if n == last_i0 + 2 and last_i0 < NGR - 1:
            epi0 = epi_ops(0)
        nleft = NGR - n
        for k, (i, j, a_, b_, wt) in enumerate(mf):
            g.wait_lg(("f", n, wt))
            if k == 0:
                for _ in range(3):
                    if rdn: tag, ins = rdn.pop(0); g.ds(tag, ins)
            c = acc(i, j) if (i, j) in started else "0"
            started.add((i, j))
            A(f"v_mfma_f32_32x32x16_bf16 {acc(i,j)}, v[{a_}:{a_+3}], v[{b_}:{b_+3}], {c}")
            if k <= 1:
                for _ in range(3):
                    if rdn: tag, ins = rdn.pop(0); g.ds(tag, ins)
            if 1 <= k <= rate:
                if not ops and (next_item < 5 or (next_item - 5) in free_chunks) and (next_item <= 6 or (next_item == 7 and n >= LEAD) or (next_item == 8 and pre2 and n >= pre2)):
                    ops = item_ops(next_item); next_item += 1
                if ops: emit_op(ops.pop(0))
            for _ in range(5 if k >= 1 else 2):
                if epi0: emit_epi(epi0.pop(0))
        assert not rdn
        mf = mfn
    while ops: emit_op(ops.pop(0))
    stamp("p1end")
    npad = len(epi0)
    while epi0: emit_epi(epi0.pop(0))
    if last_i0 == NGR - 1:
        A("s_nop 8")
        for op in epi_ops(0): emit_epi(op)
    elif last_i0 + 2 >= NGR:
        A("s_nop 7")
        for op in epi_ops(0): emit_epi(op)
    else:
        A(f"s_nop {max(0, 10 - npad)}")
    for op in epi_ops(1): emit_epi(op)
    stamp("hst_iss")
    A("s_barrier")
    emit_item(next_item); next_item += 1
    g.wait_vm("epoch")
    A("v_cmp_ne_u32 vcc, 0, v32")
    A("s_cbranch_vccnz L_epoch_ok")
    A("s_mov_b32 s44, 0")
    g.label("L_epoch_spin")
    A("global_load_dwordx2 v[32:33], v36, s[12:13] sc0 sc1")
    A("s_waitcnt vmcnt(0)")
    A("s_add_u32 s44, s44, 1")
    A("s_cmp_ge_u32 s44, 0x40000")
    A("s_cbranch_scc1 L_epoch_ok")
    A("v_cmp_eq_u32 vcc, 0, v32")
    A("s_cbranch_vccnz L_epoch_spin")
    g.label("L_epoch_ok")
    A("v_readfirstlane_b32 s60, v32")
    A("v_readfirstlane_b32 s61, v32")
    A("s_nop 4")
    g.wait_vm("hst")
    stamp("hst_done")
    A("s_atomic_swap s60, s[4:5], 0")
    def w2addr(u, i):
        slot = [2, 3, 4, 0, 1, 2, 3][u]
        reg = [28, 40, 42][slot // 2] + i
        return reg, (slot % 2)*32768
    def stash(u):
        g.wait_vm(("w2", u))
        for s in range(4):
            for i in range(2):
                reg, so = w2addr(u, i)
                for jj in range(2):
                    a = (u*4+s)*8 + i*4 + jj*2
                    g.ds(("stash", u), f"ds_read_b64_tr_b16 a[{a}:{a+1}], v{reg} offset:{so + s*2048 + jj*1024}")
    stashed = set()
    def pre_item(n):
        if n >= 12:
            if (n - 12) not in stashed:
                stash(n - 12); stashed.add(n - 12)
            g.wait_lg(("stash", n - 12))
    stash(0); stashed.add(0)
    while next_item <= PP:
        if next_item == 11 and 1 not in stashed:
            stash(1); stashed.add(1)
        pre_item(next_item)
        if next_item == PP:
            A("s_load_dwordx8 s[16:23], s[6:7], 0 glc")
        emit_item(next_item); next_item += 1
    if 1 not in stashed:
        stash(1); stashed.add(1)
    stamp("w2iss")
    A("s_mov_b32 s44, 0")
    A("s_branch L_poll_chk")
    g.label("L_poll")
    A("s_load_dwordx8 s[16:23], s[6:7], 0 glc")
    A("s_add_u32 s44, s44, 1")
    A("s_cmp_ge_u32 s44, 0x80000")
    A("s_cbranch_scc1 L_flags_to")
    g.label("L_poll_chk")
    A("s_waitcnt lgkmcnt(0)")
    g.lg = []
    A("s_cmp_lg_u64 s[16:17], s[60:61]")
    A("s_cbranch_scc1 L_poll")
    A("s_cmp_lg_u64 s[18:19], s[60:61]")
    A("s_cbranch_scc1 L_poll")
    A("s_cmp_lg_u64 s[20:21], s[60:61]")
    A("s_cbranch_scc1 L_poll")
    A("s_cmp_lg_u32 s22, s60")
    A("s_cbranch_scc1 L_poll")
    g.label("L_flags_to")
    A("s_waitcnt lgkmcnt(0)")
    g.label("L_flags_ok")
    stamp("flags")
    HB = 128; HN = 12
    WB = 224; WN = 4
    assert HD < HN
    def hload(step):
        u, s = divmod(step, 4)
        if s == 0:
            A(f"s_bfe_u32 s58, s48, 0x{(3<<16)|(4*u):x}")
            A("s_lshl_b32 s58, s58, 13")
            A("s_add_u32 s58, s58, s56")
            A("s_add_u32 s59, s58, 4096")
        res = []
        for j in range(2):
            b = HB + (step % HN)*8 + j*4
            off = s*2048
            sreg = "s58" if off < 4096 else "s59"
            o = off % 4096
            res.append((("h", step, j), f"buffer_load_dwordx4 v[{b}:{b+3}], v{44+j}, s[28:31], {sreg} offen" + (f" offset:{o}" if o else "") + " sc1"))
        return res
    def w2reads(step):
        u, s = divmod(step, 4)
        if u < 2: return
        if s == 0: g.wait_vm(("w2", u))
        for i in range(2):
            reg, so = w2addr(u, i)
            for jj in range(2):
                b = WB + (step % WN)*8 + i*4 + jj*2
                g.ds(("wf", step), f"ds_read_b64_tr_b16 v[{b}:{b+1}], v{reg} offset:{so + s*2048 + jj*1024}")
    for st in range(HD):
        for tag, ins in hload(st): g.vmem(tag, ins)
    g.wait_lg(("stash", 1))
    rest = []
    while next_item <= 13:
        rest += item_ops(next_item); next_item += 1
    WD = 2
    for st in range(WD): w2reads(st)
    def wop_(st, i):
        u, s = divmod(st, 4)
        if u < 2:
            a0 = (u*4+s)*8 + i*4
            return f"a[{a0}:{a0+3}]"
        b = WB + (st % WN)*8 + i*4
        return f"v[{b}:{b+3}]"
    def mf2(st, i, j):
        c = "0" if st == 0 else acc(i, j)
        hb = HB + (st % HN)*8 + j*4
        A(f"v_mfma_f32_32x32x16_bf16 {acc(i,j)}, {wop_(st, i)}, v[{hb}:{hb+3}], {c}")
    def redw(q, p):
        b = ACC + q*16 + p*4
        A(f"ds_write_b128 v{48 + q//2}, v[{b}:{b+3}] offset:{(q%2)*32768 + p*1024}")
    TL = 2 if tail else 0
    for st in range(28 - TL):
        u, s = divmod(st, 4)
        if st + WD < 28: w2reads(st + WD)
        g.wait_vm(("h", st, 0))
        if st == 0: stamp("h0")
        g.wait_lg(("wf", st))
        lds = hload(st + HD) if st + HD < 28 else []
        order = [(0, 0), (1, 0), (1, 1), (0, 1)]
        if st == 27: order = [(1, 0), (0, 1), (1, 1), (0, 0)]
        for k, (i, j) in enumerate(order):
            if j == 1: g.wait_vm(("h", st, 1))
            mf2(st, i, j)
            if k % 2 == 0 and lds:
                tag, ins = lds.pop(0)
                g.vmem(tag, ins)
            if k % 2 == 1 and rest:
                emit_op(rest.pop(0))
    if TL:
        g.wait_lg(("wf", 27))
        a_, b_ = 26, 27
        g.wait_vm(("h", a_, 0)); mf2(a_, 1, 0)
        g.wait_vm(("h", a_, 1)); mf2(a_, 1, 1); mf2(a_, 0, 1)
        g.wait_vm(("h", b_, 0)); mf2(b_, 1, 0)
        g.wait_vm(("h", b_, 1)); mf2(b_, 1, 1); mf2(b_, 0, 1)
        mf2(a_, 0, 0)
        stamp("p2end")
        A("s_nop 8")
        for p in range(4): redw(2, p)
        mf2(b_, 0, 0)
        for p in range(4): redw(3, p)
        for p in range(4): redw(1, p)
    else:
        stamp("p2end")
        A("s_nop 7")
        A("s_nop 1")
        for q in (2, 1, 3):
            for p in range(4): redw(q, p)
    A("s_waitcnt lgkmcnt(0)")
    A("s_barrier")
    g.lg = []
    for p in range(4):
        for q in range(1, 4):
            b = 128 + (q-1)*16 + p*4
            g.ds(("red", p), f"ds_read_b128 v[{b}:{b+3}], v{49+q} offset:{(q%2)*32768 + p*1024}")
    for p in range(4):
        g.wait_lg(("red", p))
        for r in range(4*p, 4*p+4):
            A(f"v_add_f32 v{128+r}, v{128+r}, v{144+r}")
            A(f"v_add_f32 v{ACC+r}, v{ACC+r}, v{160+r}")
        for r in range(4*p, 4*p+4):
            A(f"v_add_f32 v{ACC+r}, v{ACC+r}, v{128+r}")
        A(f"v_cvt_pk_bf16_f32 v{176+2*p}, v{ACC+4*p}, v{ACC+4*p+1}")
        A(f"v_cvt_pk_bf16_f32 v{177+2*p}, v{ACC+4*p+2}, v{ACC+4*p+3}")
        if p % 2 == 1:
            b = 176 + 2*(p-1)
            A("s_nop 1")
            A(f"v_permlane32_swap_b32 v{b}, v{b+2}")
            A(f"v_permlane32_swap_b32 v{b+1}, v{b+3}")
            A(f"buffer_store_dwordx4 v[{b}:{b+3}], v38, s[32:35], s99 offen" + (" offset:32" if p == 3 else "") + outpol)
    if probe is not None:
        stamp("st_iss")
        A("s_waitcnt vmcnt(0)")
        stamp("st_done")
        A("s_waitcnt lgkmcnt(0)")
        A("s_add_u32 s96, s96, 2000")
        g.label("L_dly")
        A("s_memrealtime s[100:101]")
        A("s_waitcnt lgkmcnt(0)")
        A("s_sub_u32 s100, s100, s96")
        A("s_cmp_lt_i32 s100, 0")
        A("s_cbranch_scc1 L_dly")
    def dump_stamps():
        A("s_memrealtime s[94:95]")
        A("s_waitcnt lgkmcnt(0)")
        A("v_lshrrev_b32 v2, 6, v0")
        A("s_lshl_b32 s44, s2, 2")
        A("v_add_u32 v2, s44, v2")
        A("v_lshlrev_b32 v2, 8, v2")
        A(f"v_add_u32 v2, 0x{STAMP_OFF:x}, v2")
        A("s_mov_b64 exec, 1")
        regs = [62] + [64+2*i for i in range(g.nst)] + [94]
        for i, r in enumerate(regs):
            A(f"v_mov_b32 v4, s{r}")
            A(f"v_mov_b32 v5, s{r+1}")
            A(f"global_store_dwordx2 v2, v[4:5], s[14:15] offset:{8*i}")
            A("s_waitcnt vmcnt(0)")
        A("s_getreg_b32 s44, hwreg(HW_REG_XCC_ID)")
        A("v_mov_b32 v4, s44")
        A("v_mov_b32 v5, 0")
        A(f"global_store_dwordx2 v2, v[4:5], s[14:15] offset:248")
    if stamps:
        stamp("st_iss")
        A("s_waitcnt vmcnt(0)")
        stamp("st_done")
        dump_stamps()
    g.label("L_end")
    A("s_endpgm")
    if helpers:
        g.label("L_helper")
        A("s_sub_u32 s38, s37, 28")
        A(f"s_mul_i32 s38, s38, {448*896}")
        A(f"s_mul_i32 s39, s43, {112*128}")
        A("s_add_u32 s38, s38, s39")
        A("v_lshlrev_b32 v4, 7, v1")
        A("v_add_u32 v5, 0x2000, v4")
        A(f"v_min_u32 v5, {111*128}, v5")
        A("s_mov_b32 s26, 1605632")
        A("s_mov_b32 s27, 0x20000")
        A("s_waitcnt lgkmcnt(0)")
        A("s_mov_b32 s24, s8")
        A("s_mov_b32 s25, s9")
        for _ in range(hdelay): A("s_sleep 16")
        for u in range(7):
            A(f"s_mul_i32 s49, s47, {64*896}")
            A("s_add_u32 s49, s49, s38")
            A("buffer_load_dword v6, v4, s[24:27], s49 offen")
            A("buffer_load_dword v6, v5, s[24:27], s49 offen")
            A("s_add_u32 s47, s47, 1")
            A("s_cmp_eq_u32 s47, 7")
            A("s_cselect_b32 s47, 0, s47")
            if stamps:
                A(f"s_memrealtime s[{66+2*u}:{67+2*u}]")
        if stamps:
            A("s_waitcnt vmcnt(0)")
            for u in range(7, g.nst - 1):
                A(f"s_memrealtime s[{66+2*u}:{67+2*u}]")
            dump_stamps()
        A("s_endpgm")
    g.label("L_code_end")
    hdr = HEADER_COMMENTS + f"; @launch grid=({GRID},1,1) block=(256,1,1) lds=163840\n"
    hdr += f'''.amdgcn_target "amdgcn-amd-amdhsa--gfx950"
.text
.globl {KNAME}
.p2align 8
.type {KNAME},@function
{KNAME}:
'''
    ftr = f'''
.section .rodata,"a"
.p2align 6
.amdhsa_kernel {KNAME}
  .amdhsa_next_free_vgpr 320
  .amdhsa_next_free_sgpr 102
  .amdhsa_accum_offset 256
  .amdhsa_group_segment_fixed_size 0
  .amdhsa_kernarg_size 48
  .amdhsa_user_sgpr_count 2
  .amdhsa_user_sgpr_kernarg_segment_ptr 1
  .amdhsa_system_sgpr_workgroup_id_x 1
.end_amdhsa_kernel
'''
    return hdr + "\n".join(g.L) + ftr, names

if __name__ == "__main__":
    ap = argparse.ArgumentParser()
    ap.add_argument("-o", default="k6.s")
    ap.add_argument("--HD", type=int, default=5)
    ap.add_argument("--stamps", action="store_true")
    ap.add_argument("--rot1", default="g4b")
    ap.add_argument("--probe", type=int, default=None)
    for k, d in (("lead", 1), ("LEAD", 18), ("fast", 8), ("PP", 13), ("xrot1", 0), ("helpers", 0), ("hdelay", 0), ("pre2", 0), ("touch", 0)):
        ap.add_argument("--" + k, type=int, default=d)
    ap.add_argument("--order1", default="0,1,2,3,4,5a,6a,5b,6b")
    ap.add_argument("--tail", type=int, default=1)
    a = ap.parse_args()
    s, n = gen(stamps=a.stamps, rot1=a.rot1, HD=a.HD, probe=a.probe, lead=a.lead, LEAD=a.LEAD, fast=a.fast, PP=a.PP, xrot1=a.xrot1, helpers=a.helpers, order1=a.order1, tail=a.tail, hdelay=a.hdelay, pre2=a.pre2, touch=a.touch)
    open(a.o, "w").write(s)
    print("written", a.o, "names", ",".join(n), "lines", s.count("\n"))
```

```python
import sys, argparse
sys.path.insert(0, "gen")
from k1 import G, KNAME, HEADER_COMMENTS

def gen(stamps=False, probe=None, rot1="g4b", HD=5, order1="0,1,2,3,4a,5a,6a,4b,5b,6b",
        sched="2,3,45,6,7,8,", NP=3, B=16, T0=1, prio=1, aprio=0, helpers=0, ramp=1, HP=7, xo=0, HO=0, hser=0, tabm=1, cnt=""):
    g = G(); A = g.A
    NWG = 224
    GRID = 256 if helpers else 224
    FLAG_OFF = 0x800000
    STAMP_OFF = 0x8000000
    NST = 14
    g.np = 0
    names = []
    def stamp(name):
        names.append(name)
        if probe is not None:
            if g.np == probe:
                A("s_memrealtime s[96:97]")
            g.np += 1
        if stamps:
            A(f"s_memrealtime s[{64+2*g.nst}:{65+2*g.nst}]")
            g.nst += 1
            assert g.nst <= NST
    def mod7(reg, tmp="s44"):
        A(f"s_cmp_ge_u32 {reg}, 7")
        A(f"s_cselect_b32 {tmp}, 7, 0")
        A(f"s_sub_u32 {reg}, {reg}, {tmp}")
    SLOT2 = [2, 3, 4, 0, 1, 2, 3]
    sch = [[int(ch) for ch in tok] for tok in sched.split(",")]
    assert len(sch) == 7
    aux_items = [0, 1] + [n for tok in sch for n in tok]
    assert aux_items == list(range(len(aux_items))) and len(aux_items) >= 7
    npre = len(aux_items) - 7
    def otab(r):
        pf = list(range(NP))
        rest = list(range(NP, 7))
        seq = []
        if NP == 0 and tabm == 2:
            return [r, 4, (r+1) % 4, (r+2) % 4, 5, (r+3) % 4, 6]
        if NP == 0 and tabm == 4:
            return [r % 3, 3, (r+1) % 3, 4, (r+2) % 3, 5, 6]
        if NP == 0 and tabm == 5:
            return [r % 2, 2, (r+1) % 2, 3, 4, 5, 6]
        if NP == 0 and tabm == 3:
            return [4, r, 5, (r+1) % 4, (r+2) % 4, (r+3) % 4, 6]
        if NP == 0:
            l2 = 4 + r % 3
            return [r, l2] + [(r + k) % 4 for k in (1, 2, 3)] + [4 + (l2 - 4 + k) % 3 for k in (1, 2)]
        rr = [rest[(r + k) % len(rest)] for k in range(len(rest))] if rest else []
        seq = pf[:npre] + rr[:1] + pf[npre:] + rr[1:]
        assert sorted(seq) == list(range(7))
        return seq
    tabs = [sum(o << (4*p) for p, o in enumerate(otab(r))) for r in range(4)]

    if stamps:
        A("s_memrealtime s[62:63]")
    stamp("start")
    A(f"s_cmp_ge_u32 s2, {GRID}")
    A("s_cbranch_scc1 L_end")
    A("s_load_dwordx8 s[4:11], s[0:1], 0")
    A("s_load_dwordx4 s[12:15], s[0:1], 32")
    A("s_getpc_b64 s[58:59]")
    g.label("L_pc")
    A("v_lshlrev_b32 v5, 7, v0")
    A("v_min_u32 v5, L_code_end-L_pc-4, v5")
    A("v_lshrrev_b32 v2, 6, v0")
    A("global_load_dword v47, v5, s[58:59]")
    A("v_and_b32 v1, 63, v0")
    A("s_and_b32 s36, s2, 7")
    A("v_readfirstlane_b32 s3, v2")
    A("s_lshr_b32 s37, s2, 3")
    if helpers:
        A(f"s_cmp_ge_u32 s2, {NWG}")
        A("s_cbranch_scc1 L_helper")
    A("s_mul_i32 s38, s37, 37")
    A("s_lshr_b32 s38, s38, 8")
    A("s_mul_i32 s39, s38, 7")
    A("s_sub_u32 s39, s37, s39")
    A("s_lshr_b32 s40, s36, 1")
    A("s_lshl_b32 s40, s40, 2")
    A("s_add_u32 s40, s40, s38")
    A("s_and_b32 s41, s36, 1")
    A("s_mul_i32 s41, s41, 7")
    A("s_add_u32 s41, s41, s39")
    A("v_and_b32 v2, 3, v2")
    A("v_lshrrev_b32 v3, 3, v1")
    A("v_and_b32 v4, 7, v1")
    A("s_and_b32 s43, s3, 3")
    A("s_cmp_lt_u32 s3, 4")
    A("s_cbranch_scc1 L_compute")

    def item_ops(n):
        ops = []
        if n < 7:
            slot = n % 5
            tag = ("p1", n)
            pre = [f"s_bfe_u32 s46, s57, 0x{(3<<16)|(4*n):x}", "s_lshl_b32 s49, s46, 7", f"s_add_u32 m0, s45, {slot*32768}", f"s_mul_i32 s50, s46, {64*3584}"]
            for i in range(4):
                off = f" offset:{1024*i}" if i else ""
                ops.append((pre if i == 0 else [], tag, f"buffer_load_dwordx4 v{10+i}, s[16:19], s49 offen{off} lds"))
            for i in range(4):
                off = f" offset:{1024*i}" if i else ""
                pre = [f"s_add_u32 m0, s45, {slot*32768+16384}", "s_nop 0"]
                ops.append((pre if i == 0 else [], tag, f"buffer_load_dwordx4 v{14+i}, s[20:23], s50 offen{off} lds"))
        else:
            u = n - 7
            slot = SLOT2[u]
            tag = ("w2", u)
            pre = [f"s_bfe_u32 s49, s48, 0x{(3<<16)|(4*u):x}", f"s_mul_i32 s49, s49, {64*896}", f"s_add_u32 m0, s51, {slot*32768}", f"s_add_u32 s50, s49, {32*896}"]
            for i in range(4):
                off = f" offset:{1024*i}" if i else ""
                ops.append((pre if i == 0 else [], tag, f"buffer_load_dwordx4 v{18+i}, s[24:27], s49 offen{off} lds"))
            for i in range(4):
                off = f" offset:{1024*i}" if i else ""
                pre = [f"s_add_u32 m0, s51, {slot*32768+4096}", "s_nop 0"]
                ops.append((pre if i == 0 else [], tag, f"buffer_load_dwordx4 v{18+i}, s[24:27], s50 offen{off} lds"))
        return ops
    def emit_op(op):
        pre, tag, ins = op
        for p in pre: A(p)
        g.vmem(tag, ins)
    def emit_item(n):
        for op in item_ops(n): emit_op(op)
    def w2_setup():
        A("v_mul_u32_u24 v5, 448, v2")
        A("v_add_u32 v5, v5, v3")
        A("v_mul_u32_u24 v7, 896, v5")
        A("v_bfe_u32 v6, v1, 4, 1")
        A("v_lshlrev_b32 v6, 2, v6")
        A("v_xor_b32 v8, v6, v4")
        A("v_lshl_add_u32 v18, v8, 4, v7")
        for i in range(1, 4):
            A(f"v_add_u32 v{18+i}, {i*(7168-1024)}, v18")
        A("s_lshl_b32 s44, s39, 7")
        A("s_add_u32 s24, s8, s44")
        A("s_addc_u32 s25, s9, 0")
        A("s_sub_u32 s26, 1605632, s44")
        A("s_mov_b32 s27, 0x20000")
        A("s_lshl_b32 s51, s43, 13")
        A("s_mov_b32 s47, s36")
        mod7("s47")
        A(f"s_mov_b32 s48, 0x{tabs[0]:x}")
        for r in range(1, 4):
            A(f"s_cmp_eq_u32 s38, {r}")
            A(f"s_cselect_b32 s48, 0x{tabs[r]:x}, s48")
        A("s_mul_i32 s44, s47, 0x1111111")
        A("s_add_u32 s48, s48, s44")
        A("s_add_u32 s44, s48, 0x1111111")
        A("s_and_b32 s44, s44, 0x8888888")
        A("s_lshr_b32 s44, s44, 3")
        A("s_mul_i32 s44, s44, 7")
        A("s_sub_u32 s48, s48, s44")

    groups = []
    for tok in order1.split(","):
        t = int(tok[0])
        if len(tok) == 1:
            for s_ in range(4): groups.append((t, s_, None))
        else:
            for s_ in (0, 2): groups.append((t, s_, "ab".index(tok[1])))
    NGR = len(groups); assert NGR == 28
    first_grp = {t: min(n for n, gr in enumerate(groups) if gr[0] == t) for t in range(7)}
    last_read = {t: max(n for n, gr in enumerate(groups) if gr[0] == t) for t in range(7)}

    if aprio: A(f"s_setprio {aprio}")
    A("v_lshl_add_u32 v5, v2, 5, v3")
    A("v_mul_u32_u24 v7, 896, v5")
    A("v_lshrrev_b32 v6, 1, v3")
    A("v_xor_b32 v8, v6, v4")
    A("v_lshl_add_u32 v10, v8, 4, v7")
    A("v_xor_b32 v8, 4, v8")
    A("v_lshl_add_u32 v11, v8, 4, v7")
    A(f"v_add_u32 v11, {7168-1024}, v11")
    A(f"v_add_u32 v12, {2*(7168-1024)}, v10")
    A(f"v_add_u32 v13, {2*(7168-1024)}, v11")
    A("v_lshrrev_b32 v9, 4, v1")
    A("v_and_b32 v22, 15, v1")
    A("v_lshl_add_u32 v5, v2, 4, v9")
    A("v_mul_u32_u24 v7, 3584, v5")
    A("v_lshlrev_b32 v6, 2, v9")
    A("v_xor_b32 v8, v6, v22")
    A("v_lshl_add_u32 v14, v8, 4, v7")
    for i in range(1, 4):
        A(f"v_add_u32 v{14+i}, {i*(14336-1024)}, v14")
    A("s_lshl_b32 s45, s43, 12")
    ORD = {"g4b": ["0123456", "2345601", "4560123", "6012345"],
           "m3": ["0124563", "0134562", "4560123", "4501263"],
           "m3b": ["0124563", "0314562", "4560123", "4510263"],
           "m4": ["0123456", "0234561", "4560123", "4601235"],
           "g2": ["0123456", "4560123", "0123456", "4560123"]}[rot1]
    ot = [sum(int(ch) << (4*p) for p, ch in enumerate(o)) for o in ORD]
    for o in ORD: assert sorted(o) == list("0123456")
    A("s_add_u32 s46, s38, s39")
    A("s_bitcmp1_b32 s46, 0")
    A(f"s_mov_b32 s57, 0x{ot[0]:x}")
    A(f"s_cselect_b32 s57, 0x{ot[1]:x}, s57")
    A(f"s_mov_b32 s44, 0x{ot[2]:x}")
    A(f"s_cselect_b32 s44, 0x{ot[3]:x}, s44")
    A("s_bitcmp1_b32 s46, 1")
    A("s_cselect_b32 s57, s44, s57")
    if xo:
        A("s_lshr_b32 s44, s36, 1")
        A("s_add_u32 s44, s44, s36")
        A("s_and_b32 s44, s44, 1")
        A(f"s_mul_i32 s44, s44, 0x{0x1111111*xo:x}")
        A("s_add_u32 s57, s57, s44")
        A("s_add_u32 s44, s57, 0x1111111")
        A("s_and_b32 s44, s44, 0x8888888")
        A("s_lshr_b32 s44, s44, 3")
        A("s_mul_i32 s44, s44, 7")
        A("s_sub_u32 s57, s57, s44")
    A("s_mul_i32 s44, s40, 114688")
    A("s_lshl_b32 s49, s41, 8")
    A("s_mov_b32 s18, 114688")
    A("s_mov_b32 s19, 0x20000")
    A("s_sub_u32 s22, 1605632, s49")
    A("s_mov_b32 s23, 0x20000")
    A("s_waitcnt lgkmcnt(0)")
    A("s_add_u32 s16, s4, s44")
    A("s_addc_u32 s17, s5, 0")
    A("s_add_u32 s20, s6, s49")
    A("s_addc_u32 s21, s7, 0")
    emit_item(0)
    w2_setup()
    A(f"s_mul_i32 s44, s43, {448*896}")
    A("s_lshl_b32 s52, s37, 11")
    A("s_add_u32 s44, s44, s52")
    A("s_add_u32 s52, s8, s44")
    A("s_addc_u32 s53, s9, 0")
    emit_item(1)
    pf = [(p, k) for p in range(NP) for k in range(32)] if B else []
    def pf_batch(nb):
        for _ in range(nb):
            if not pf: return
            p, k = pf.pop(0)
            if k == 0:
                A(f"s_mul_i32 s44, s47, {64*896}")
                A("s_add_u32 s54, s52, s44")
                A("s_addc_u32 s55, s53, 0")
                A("s_add_u32 s47, s47, 1")
                A("s_cmp_eq_u32 s47, 7")
                A("s_cselect_b32 s47, 0, s47")
            A(f"s_load_dword s56, s[54:55], {k*64}")
    cnts = [int(x) for x in cnt.split(",")] if cnt else None
    allops = [(n, op) for n in aux_items[2:] for op in item_ops(n)]
    if cnts: assert sum(cnts) == len(allops)
    for t in range(7):
        g.wait_vm(("p1", t))
        A("s_barrier")
        if stamps: A(f"s_memrealtime s[{66+2*t}:{67+2*t}]")
        if t >= T0: pf_batch(B)
        if cnts:
            for _ in range(cnts[t]):
                n, op = allops.pop(0)
                if n >= 5: assert last_read[n - 5] < first_grp[t], (n, t)
                emit_op(op)
            if t < 6: assert not any(n <= t + 1 for n, _ in allops)
        else:
          for n in sch[t]:
            if n >= 5:
                old = n - 5
                assert last_read[old] < first_grp[t], (n, t)
            emit_item(n)
    A("s_waitcnt vmcnt(0)")
    if stamps: A(f"s_memrealtime s[80:81]")
    A("s_barrier")
    pf_batch(len(pf))
    if stamps:
        A("s_waitcnt lgkmcnt(0)")
        for u in range(9, NST): A(f"s_memrealtime s[{64+2*u}:{65+2*u}]")
        A("s_barrier")
        A("s_branch L_dump")
    g.label("L_end")
    A("s_endpgm")
    g.vm = []
    if helpers:
        g.label("L_helper")
        A("s_sub_u32 s38, s37, 28")
        A(f"s_mul_i32 s38, s38, {448*896}")
        A(f"s_mul_i32 s39, s3, {56*128}")
        A("s_add_u32 s38, s38, s39")
        A("v_min_u32 v4, 55, v1")
        A("v_lshlrev_b32 v4, 7, v4")
        A(f"s_add_u32 s47, s36, {HO}")
        mod7("s47")
        A("s_mov_b32 s26, 1605632")
        A("s_mov_b32 s27, 0x20000")
        A("s_waitcnt lgkmcnt(0)")
        A("s_mov_b32 s24, s8")
        A("s_mov_b32 s25, s9")
        for u in range(HP):
            A(f"s_mul_i32 s49, s47, {64*896}")
            A("s_add_u32 s49, s49, s38")
            if u == 0:
                for k in range(ramp):
                    A(f"s_cmp_lg_u32 s3, {k}")
                    A(f"s_cbranch_scc1 L_hr{k}")
                    A("buffer_load_dword v6, v4, s[24:27], s49 offen")
                    A("s_waitcnt vmcnt(0)")
                    g.label(f"L_hr{k}")
                    A("s_barrier")
            A("buffer_load_dword v6, v4, s[24:27], s49 offen")
            if hser: A("s_waitcnt vmcnt(0)")
            A("s_add_u32 s47, s47, 1")
            A("s_cmp_eq_u32 s47, 7")
            A("s_cselect_b32 s47, 0, s47")
            if stamps: A(f"s_memrealtime s[{66+2*u}:{67+2*u}]")
        if stamps:
            A("s_waitcnt vmcnt(0)")
            for u in range(HP, NST-1): A(f"s_memrealtime s[{66+2*u}:{67+2*u}]")
            A("s_branch L_dump")
        A("s_endpgm")

    g.label("L_compute")
    A("s_memrealtime s[60:61]")
    if prio: A(f"s_setprio {prio}")
    A("s_waitcnt lgkmcnt(0)")
    stamp("karg")
    A("v_mov_b32 v36, 0")
    A("s_or_b32 s44, s2, s43")
    A("s_cmp_lg_u32 s44, 0")
    A("s_cbranch_scc1 L_noepoch")
    A("s_or_b32 s60, s60, 1")
    A("s_atomic_swap s60, s[12:13], 0")
    g.label("L_noepoch")
    w2_setup()
    A("s_lshl_b32 s42, s36, 2")
    A("s_add_u32 s42, s42, s38")
    A("s_mov_b32 s28, s14")
    A("s_mov_b32 s29, s15")
    A(f"s_mov_b32 s30, {FLAG_OFF}")
    A("s_mov_b32 s31, 0x20000")
    A("s_mov_b32 s32, s10")
    A("s_mov_b32 s33, s11")
    A("s_mov_b32 s34, 1835008")
    A("s_mov_b32 s35, 0x20000")
    A("v_and_b32 v2, 31, v1")
    A("v_lshrrev_b32 v3, 5, v1")
    A("v_bfe_u32 v4, v1, 1, 3")
    A("v_xor_b32 v4, v4, v3")
    A("v_lshlrev_b32 v4, 4, v4")
    A("v_lshl_add_u32 v4, v2, 7, v4")
    A("s_lshr_b32 s52, s43, 1")
    A("s_and_b32 s53, s43, 1")
    A("s_lshl_b32 s44, s52, 13")
    A("v_add_u32 v22, s44, v4")
    for s in range(1, 4):
        A(f"v_xor_b32 v{22+s}, {s<<5}, v22")
    A("v_bfe_u32 v5, v1, 2, 2")
    A("v_lshl_add_u32 v6, v3, 3, v5")
    A("v_lshlrev_b32 v6, 8, v6")
    A("v_and_b32 v7, 3, v1")
    A("v_lshlrev_b32 v7, 3, v7")
    A("v_bfe_u32 v8, v1, 4, 1")
    A("v_lshl_add_u32 v7, v8, 5, v7")
    A("s_lshl_b32 s44, s53, 1")
    A("v_xor_b32 v9, s44, v5")
    A("v_lshl_add_u32 v9, v9, 6, v7")
    A("v_add_u32 v26, v9, v6")
    A("v_add_u32 v26, 16384, v26")
    A("v_xor_b32 v27, 64, v26")
    A("v_lshl_add_u32 v6, v3, 2, v5")
    A("v_lshlrev_b32 v6, 7, v6")
    A("v_lshrrev_b32 v9, 1, v5")
    A("v_xor_b32 v9, s52, v9")
    A("v_lshl_add_u32 v9, v9, 6, v7")
    A("v_add3_u32 v28, v9, v6, s51")
    A("v_xor_b32 v29, 64, v28")
    A("v_add_u32 v40, 0x10000, v28")
    A("v_add_u32 v41, 0x10000, v29")
    A("v_add_u32 v42, 0x20000, v28")
    A("v_add_u32 v43, 0x20000, v29")
    A("v_lshlrev_b32 v30, 4, v1")
    A("s_lshl_b32 s44, s53, 10")
    A("v_add_u32 v44, s44, v30")
    A("v_xor_b32 v45, 0x400, v44")
    A("s_lshl_b32 s44, s40, 1")
    A("s_add_u32 s44, s44, s52")
    A("s_mul_i32 s54, s44, 112")
    A("s_lshl_b32 s55, s41, 1")
    A("s_add_u32 s55, s55, s53")
    A("s_lshl_b32 s56, s55, 2")
    A("s_add_u32 s54, s54, s56")
    A("s_lshl_b32 s54, s54, 11")
    A("s_add_u32 s98, s54, 4096")
    A("s_mul_i32 s56, s55, 37")
    A("s_lshr_b32 s56, s56, 8")
    A("s_mul_i32 s57, s56, 7")
    A("s_sub_u32 s57, s55, s57")
    A("s_lshl_b32 s44, s44, 2")
    A("s_add_u32 s44, s44, s56")
    A("s_lshl_b32 s44, s44, 7")
    A("s_lshl_b32 s57, s57, 2")
    A("s_add_u32 s55, s44, s57")
    A(f"s_add_u32 s55, s55, {FLAG_OFF}")
    A("s_add_u32 s4, s14, s55")
    A("s_addc_u32 s5, s15, 0")
    A("s_mul_i32 s56, s42, 112")
    A("s_mul_i32 s57, s43, 28")
    A("s_add_u32 s56, s56, s57")
    A("s_lshl_b32 s56, s56, 11")
    A("s_lshl_b32 s57, s42, 2")
    A("s_add_u32 s57, s57, s43")
    A("s_lshl_b32 s57, s57, 7")
    A(f"s_add_u32 s57, s57, {FLAG_OFF}")
    A("s_add_u32 s6, s14, s57")
    A("s_addc_u32 s7, s15, 0")
    A("s_lshl_b32 s44, s42, 6")
    A("s_lshl_b32 s58, s53, 5")
    A("s_add_u32 s44, s44, s58")
    A("s_mul_i32 s44, s44, 896")
    A("s_lshl_b32 s58, s39, 7")
    A("s_add_u32 s44, s44, s58")
    A("s_lshl_b32 s58, s52, 6")
    A("s_add_u32 s99, s44, s58")
    A("v_mul_u32_u24 v38, 896, v2")
    A("v_lshl_add_u32 v38, v3, 4, v38")
    A("v_add_u32 v10, s51, v30")
    A("v_add_u32 v11, 0x10000, v10")
    A("v_xor_b32 v12, 0x2000, v10")
    A("v_xor_b32 v13, 0x4000, v11")
    A("v_xor_b32 v14, 0x6000, v11")
    A("s_waitcnt lgkmcnt(0)")

    ACC = 48
    def acc(i, j):
        b = ACC + (i*2+j)*16
        return f"v[{b}:{b+15}]"
    FB = 112; PK = 160; SB = 192
    basex = [0]*4; basew = [0]*2
    def rebase(reg, cur, want):
        if cur != want:
            A(f"v_add_u32 v{reg}, 0x{(want - cur) & 0xffffffff:x}, v{reg}")
        return want
    synced = set()
    def chunk_sync(t):
        if g.lg:
            A("s_waitcnt lgkmcnt(0)"); g.lg = []
        A("s_barrier")
        synced.add(t)
        if t in (0, 3, 6): stamp(f"c{t}")
    def plan(n):
        t, s_, i = groups[n]
        slot = t % 5
        want = (slot // 2) * 65536
        so = slot*32768 - want
        b0 = FB + (n % 2)*24
        rd = []
        def W(ss, ii, reg):
            basew[ii] = rebase(26+ii, basew[ii], want)
            for jj in range(2):
                rd.append((("f", n, reg), f"ds_read_b64_tr_b16 v[{reg+2*jj}:{reg+2*jj+1}], v{26+ii} offset:{so + ss*4096 + jj*1024}"))
        def X(ss, jj, reg):
            basex[ss] = rebase(22+ss, basex[ss], want)
            rd.append((("f", n, reg), f"ds_read_b128 v[{reg}:{reg+3}], v{22+ss} offset:{so + jj*4096}"))
        if i is None:
            W(s_, 0, b0); X(s_, 0, b0+4); X(s_, 1, b0+8); W(s_, 1, b0+12)
            mf = [(0, 0, b0, b0+4, b0+4), (0, 1, b0, b0+8, b0+8), (1, 1, b0+12, b0+8, b0+12), (1, 0, b0+12, b0+4, b0+12)]
        else:
            W(s_, i, b0); X(s_, 0, b0+4); X(s_, 1, b0+8); W(s_+1, i, b0+12); X(s_+1, 0, b0+16); X(s_+1, 1, b0+20)
            mf = [(i, 0, b0, b0+4, b0+4), (i, 1, b0, b0+8, b0+8), (i, 0, b0+12, b0+16, b0+16), (i, 1, b0+12, b0+20, b0+20)]
        return rd, mf
    def epi_ops(i):
        out = []
        for j in range(2):
            for half in range(2):
                src = ACC + (i*2+j)*16 + half*8
                dst = PK + ((i*2+j)*2+half)*4
                for e in range(4):
                    out.append(("v", f"v_cvt_pk_bf16_f32 v{dst+e}, v{src+2*e}, v{src+2*e+1}"))
                for e in range(4):
                    out.append(("v", f"v_pk_max_i16 v{dst+e}, v{dst+e}, 0"))
                off = (2*i+half)*2048 + j*1024
                sreg = "s54" if off < 4096 else "s98"
                o = off % 4096
                out.append(("m", f"buffer_store_dwordx4 v[{dst}:{dst+3}], v30, s[28:31], {sreg} offen" + (f" offset:{o}" if o else "") + " sc1"))
        return out
    def emit_epi(op):
        if op[0] == "v": A(op[1])
        else: g.vmem("hst", op[1])
    last_i0 = max(n for n, (t, s_, i) in enumerate(groups) if i in (None, 0))
    epi0 = []
    started = set()
    chunk_sync(0)
    rd, mf = plan(0)
    for tag, ins in rd: g.ds(tag, ins)
    for n in range(NGR):
        rdn = []; mfn = None
        if n + 1 < NGR:
            tn = groups[n+1][0]
            if tn not in synced: chunk_sync(tn)
            rdn, mfn = plan(n + 1)
        if n == 8:
            g.vmem("epoch", "global_load_dword v32, v36, s[12:13] sc1")
        if n == last_i0 + 2 and last_i0 < NGR - 1:
            epi0 = epi_ops(0)
        for k, (i, j, a_, b_, wt) in enumerate(mf):
            g.wait_lg(("f", n, wt))
            if k == 0:
                for _ in range(3):
                    if rdn: tag, ins = rdn.pop(0); g.ds(tag, ins)
            c = acc(i, j) if (i, j) in started else "0"
            started.add((i, j))
            A(f"v_mfma_f32_32x32x16_bf16 {acc(i,j)}, v[{a_}:{a_+3}], v[{b_}:{b_+3}], {c}")
            if k <= 1:
                for _ in range(3):
                    if rdn: tag, ins = rdn.pop(0); g.ds(tag, ins)
            for _ in range(5 if k >= 1 else 2):
                if epi0: emit_epi(epi0.pop(0))
        assert not rdn
        mf = mfn
    stamp("p1end")
    npad = len(epi0)
    while epi0: emit_epi(epi0.pop(0))
    if last_i0 == NGR - 1:
        A("s_nop 8")
        for op in epi_ops(0): emit_epi(op)
    elif last_i0 + 2 >= NGR:
        A("s_nop 7")
        for op in epi_ops(0): emit_epi(op)
    else:
        A(f"s_nop {max(0, 10 - npad)}")
    for op in epi_ops(1): emit_epi(op)
    stamp("hst_iss")
    A("s_barrier")
    next_item = 7 + npre
    emit_item(next_item); next_item += 1
    def w2addr(u, i):
        slot = SLOT2[u]
        return [28, 40, 42][slot // 2] + i, (slot % 2)*32768
    stashed = set()
    def stash(u):
        if u in stashed: return
        stashed.add(u)
        g.wait_vm(("w2", u))
        for s in range(4):
            for i in range(2):
                reg, so = w2addr(u, i)
                for jj in range(2):
                    a = SB + (u*4+s)*8 + i*4 + jj*2
                    g.ds(("stash", u), f"ds_read_b64_tr_b16 v[{a}:{a+1}], v{reg} offset:{so + s*2048 + jj*1024}")
    for u in range(min(npre, 2)): stash(u)
    g.wait_vm("epoch")
    A("v_cmp_ne_u32 vcc, 0, v32")
    A("s_cbranch_vccnz L_epoch_ok")
    A("s_mov_b32 s44, 0")
    g.label("L_epoch_spin")
    A("global_load_dword v32, v36, s[12:13] sc1")
    A("s_waitcnt vmcnt(0)")
    A("s_add_u32 s44, s44, 1")
    A("s_cmp_ge_u32 s44, 0x40000")
    A("s_cbranch_scc1 L_epoch_ok")
    A("v_cmp_eq_u32 vcc, 0, v32")
    A("s_cbranch_vccnz L_epoch_spin")
    g.label("L_epoch_ok")
    A("v_readfirstlane_b32 s60, v32")
    A("v_readfirstlane_b32 s61, v32")
    A("s_nop 4")
    g.wait_vm("hst")
    stamp("hst_done")
    A("s_atomic_swap s60, s[4:5], 0")
    while next_item <= 13:
        if next_item == 10: stash(0)
        if next_item == 11: stash(1)
        if next_item >= 12: g.wait_lg(("stash", next_item - 12))
        if next_item == 13:
            A("s_load_dwordx8 s[16:23], s[6:7], 0 glc")
        emit_item(next_item); next_item += 1
    stamp("w2iss")
    A("s_mov_b32 s44, 0")
    A("s_branch L_poll_chk")
    g.label("L_poll")
    A("s_load_dwordx8 s[16:23], s[6:7], 0 glc")
    A("s_add_u32 s44, s44, 1")
    A("s_cmp_ge_u32 s44, 0x80000")
    A("s_cbranch_scc1 L_flags_to")
    g.label("L_poll_chk")
    A("s_waitcnt lgkmcnt(0)")
    g.lg = []
    A("s_cmp_lg_u64 s[16:17], s[60:61]")
    A("s_cbranch_scc1 L_poll")
    A("s_cmp_lg_u64 s[18:19], s[60:61]")
    A("s_cbranch_scc1 L_poll")
    A("s_cmp_lg_u64 s[20:21], s[60:61]")
    A("s_cbranch_scc1 L_poll")
    A("s_cmp_lg_u32 s22, s60")
    A("s_cbranch_scc1 L_poll")
    g.label("L_flags_to")
    A("s_waitcnt lgkmcnt(0)")
    stamp("flags")
    HB = 112; HN = 6
    WB = 160; WN = 4
    assert HD < HN
    def hload(step):
        u, s = divmod(step, 4)
        if s == 0:
            A(f"s_bfe_u32 s58, s48, 0x{(3<<16)|(4*u):x}")
            A("s_lshl_b32 s58, s58, 13")
            A("s_add_u32 s58, s58, s56")
            A("s_add_u32 s59, s58, 4096")
        res = []
        for j in range(2):
            b = HB + (step % HN)*8 + j*4
            off = s*2048
            sreg = "s58" if off < 4096 else "s59"
            o = off % 4096
            res.append((("h", step, j), f"buffer_load_dwordx4 v[{b}:{b+3}], v{44+j}, s[28:31], {sreg} offen" + (f" offset:{o}" if o else "") + " sc1"))
        return res
    def w2reads(step):
        u, s = divmod(step, 4)
        if u < 2: return
        if s == 0: g.wait_vm(("w2", u))
        for i in range(2):
            reg, so = w2addr(u, i)
            for jj in range(2):
                b = WB + (step % WN)*8 + i*4 + jj*2
                g.ds(("wf", step), f"ds_read_b64_tr_b16 v[{b}:{b+1}], v{reg} offset:{so + s*2048 + jj*1024}")
    for st in range(HD):
        for tag, ins in hload(st): g.vmem(tag, ins)
    WD = 2
    def mf2(st, i, j):
        c = "0" if st == 0 else acc(i, j)
        hb = HB + (st % HN)*8 + j*4
        b = (SB + st*8 if st < 8 else WB + (st % WN)*8) + i*4
        A(f"v_mfma_f32_32x32x16_bf16 {acc(i,j)}, v[{b}:{b+3}], v[{hb}:{hb+3}], {c}")
    def redw(q, p):
        b = ACC + q*16 + p*4
        A(f"ds_write_b128 v{10 + q//2}, v[{b}:{b+3}] offset:{(q%2)*32768 + p*1024}")
    for st in range(26):
        w2reads(st + WD)
        g.wait_vm(("h", st, 0))
        if st == 0: stamp("h0")
        g.wait_lg(("wf", st))
        lds = hload(st + HD) if st + HD < 28 else []
        for k, (i, j) in enumerate([(0, 0), (1, 0), (1, 1), (0, 1)]):
            if j == 1: g.wait_vm(("h", st, 1))
            mf2(st, i, j)
            if k % 2 == 0 and lds:
                tag, ins = lds.pop(0)
                g.vmem(tag, ins)
    g.wait_lg(("wf", 27))
    g.wait_vm(("h", 26, 0)); mf2(26, 1, 0)
    g.wait_vm(("h", 26, 1)); mf2(26, 1, 1); mf2(26, 0, 1)
    g.wait_vm(("h", 27, 0)); mf2(27, 1, 0)
    g.wait_vm(("h", 27, 1)); mf2(27, 1, 1); mf2(27, 0, 1)
    mf2(26, 0, 0)
    stamp("p2end")
    A("s_nop 8")
    for p in range(4): redw(2, p)
    mf2(27, 0, 0)
    for p in range(4): redw(3, p)
    for p in range(4): redw(1, p)
    A("s_waitcnt lgkmcnt(0)")
    A("s_barrier")
    g.lg = []
    RB = 192
    for p in range(4):
        for q in range(1, 4):
            b = RB + (q-1)*16 + p*4
            g.ds(("red", p), f"ds_read_b128 v[{b}:{b+3}], v{11+q} offset:{(q%2)*32768 + p*1024}")
    for p in range(4):
        g.wait_lg(("red", p))
        for r in range(4*p, 4*p+4):
            A(f"v_add_f32 v{RB+r}, v{RB+r}, v{RB+16+r}")
            A(f"v_add_f32 v{ACC+r}, v{ACC+r}, v{RB+32+r}")
        for r in range(4*p, 4*p+4):
            A(f"v_add_f32 v{ACC+r}, v{ACC+r}, v{RB+r}")
        A(f"v_cvt_pk_bf16_f32 v{240+2*p}, v{ACC+4*p}, v{ACC+4*p+1}")
        A(f"v_cvt_pk_bf16_f32 v{241+2*p}, v{ACC+4*p+2}, v{ACC+4*p+3}")
        if p % 2 == 1:
            b = 240 + 2*(p-1)
            A("s_nop 1")
            A(f"v_permlane32_swap_b32 v{b}, v{b+2}")
            A(f"v_permlane32_swap_b32 v{b+1}, v{b+3}")
            A(f"buffer_store_dwordx4 v[{b}:{b+3}], v38, s[32:35], s99 offen" + (" offset:32" if p == 3 else ""))
    if probe is not None:
        stamp("st_iss")
        A("s_waitcnt vmcnt(0)")
        stamp("st_done")
        A("s_waitcnt lgkmcnt(0)")
        A("s_add_u32 s96, s96, 2000")
        g.label("L_dly")
        A("s_memrealtime s[100:101]")
        A("s_waitcnt lgkmcnt(0)")
        A("s_sub_u32 s100, s100, s96")
        A("s_cmp_lt_i32 s100, 0")
        A("s_cbranch_scc1 L_dly")
    if stamps:
        stamp("st_iss")
        A("s_waitcnt vmcnt(0)")
        stamp("st_done")
        g.label("L_dump")
        A("s_memrealtime s[94:95]")
        A("s_waitcnt lgkmcnt(0)")
        A("s_lshl_b32 s44, s2, 3")
        A("s_add_u32 s44, s44, s3")
        A("s_lshl_b32 s44, s44, 8")
        A(f"s_add_u32 s44, s44, 0x{STAMP_OFF:x}")
        A("v_mov_b32 v2, s44")
        A("s_mov_b64 exec, 1")
        regs = [62] + [64+2*i for i in range(NST)] + [94]
        for i, r in enumerate(regs):
            A(f"v_mov_b32 v4, s{r}")
            A(f"v_mov_b32 v5, s{r+1}")
            A(f"global_store_dwordx2 v2, v[4:5], s[14:15] offset:{8*i}")
            A("s_waitcnt vmcnt(0)")
    A("s_endpgm")
    g.label("L_code_end")
    hdr = HEADER_COMMENTS + f"; @launch grid=({GRID},1,1) block=(512,1,1) lds=163840\n"
    hdr += f'''.amdgcn_target "amdgcn-amd-amdhsa--gfx950"
.text
.globl {KNAME}
.p2align 8
.type {KNAME},@function
{KNAME}:
'''
    ftr = f'''
.section .rodata,"a"
.p2align 6
.amdhsa_kernel {KNAME}
  .amdhsa_next_free_vgpr 256
  .amdhsa_next_free_sgpr 102
  .amdhsa_accum_offset 256
  .amdhsa_group_segment_fixed_size 0
  .amdhsa_kernarg_size 48
  .amdhsa_user_sgpr_count 2
  .amdhsa_user_sgpr_kernarg_segment_ptr 1
  .amdhsa_system_sgpr_workgroup_id_x 1
.end_amdhsa_kernel
'''
    return hdr + "\n".join(g.L) + ftr, names

if __name__ == "__main__":
    ap = argparse.ArgumentParser()
    ap.add_argument("-o", default="k7.s")
    ap.add_argument("--stamps", action="store_true")
    ap.add_argument("--probe", type=int, default=None)
    ap.add_argument("--rot1", default="m3")
    ap.add_argument("--order1", default="0,1,2,3,4a,5a,6a,4b,5b,6b")
    ap.add_argument("--sched", default="2,3,45,67,,,")
    for k, d in (("HD", 5), ("NP", 0), ("B", 0), ("T0", 1), ("prio", 1), ("aprio", 0), ("helpers", 0), ("ramp", 1), ("HP", 7), ("xo", 1), ("HO", 0), ("hser", 0), ("tabm", 1)):
        ap.add_argument("--" + k, type=int, default=d)
    ap.add_argument("--cnt", default="")
    a = ap.parse_args()
    kw = vars(a).copy(); o = kw.pop("o")
    s, n = gen(**kw)
    open(o, "w").write(s)
    print("written", o, "names", ",".join(n), "lines", s.count("\n"))
```

```python
import sys, argparse
sys.path.insert(0, "gen")
from k1 import G, KNAME, HEADER_COMMENTS

def gen(stamps=False, probe=None, rot1="g4b", HD=5, order1="0,1,2,3,4a,5a,6a,4b,5b,6b",
        sched="2,3,45,6,7,8,", NP=3, B=16, T0=1, prio=1, aprio=0, helpers=0, ramp=1, HP=7, xo=0, HO=0, hser=0, tabm=1, hh=0, w8=0, hx=0, cnt=""):
    g = G(); A = g.A
    NWG = 224
    GRID = 256 if helpers else 224
    FLAG_OFF = 0x800000
    STAMP_OFF = 0x8000000
    NST = 14
    g.np = 0
    names = []
    def stamp(name):
        names.append(name)
        if probe is not None:
            if g.np == probe:
                A("s_memrealtime s[96:97]")
            g.np += 1
        if stamps:
            A(f"s_memrealtime s[{64+2*g.nst}:{65+2*g.nst}]")
            g.nst += 1
            assert g.nst <= NST
    def mod7(reg, tmp="s44"):
        A(f"s_cmp_ge_u32 {reg}, 7")
        A(f"s_cselect_b32 {tmp}, 7, 0")
        A(f"s_sub_u32 {reg}, {reg}, {tmp}")
    SLOT2 = [2, 3, 4, 0, 1, 2, 3]
    sch = [[int(ch) for ch in tok] for tok in sched.split(",")]
    assert len(sch) == 7
    aux_items = [0, 1] + [n for tok in sch for n in tok]
    assert aux_items == list(range(len(aux_items))) and len(aux_items) >= 7
    npre = len(aux_items) - 7
    def otab(r):
        pf = list(range(NP))
        rest = list(range(NP, 7))
        seq = []
        if NP == 0 and tabm == 2:
            return [r, 4, (r+1) % 4, (r+2) % 4, 5, (r+3) % 4, 6]
        if NP == 0 and tabm == 4:
            return [r % 3, 3, (r+1) % 3, 4, (r+2) % 3, 5, 6]
        if NP == 0 and tabm == 5:
            return [r % 2, 2, (r+1) % 2, 3, 4, 5, 6]
        if NP == 0 and tabm == 3:
            return [4, r, 5, (r+1) % 4, (r+2) % 4, (r+3) % 4, 6]
        if NP == 0:
            l2 = 4 + r % 3
            return [r, l2] + [(r + k) % 4 for k in (1, 2, 3)] + [4 + (l2 - 4 + k) % 3 for k in (1, 2)]
        rr = [rest[(r + k) % len(rest)] for k in range(len(rest))] if rest else []
        seq = pf[:npre] + rr[:1] + pf[npre:] + rr[1:]
        assert sorted(seq) == list(range(7))
        return seq
    tabs = [sum(o << (4*p) for p, o in enumerate(otab(r))) for r in range(4)]

    if stamps:
        A("s_memrealtime s[62:63]")
    stamp("start")
    A(f"s_cmp_ge_u32 s2, {GRID}")
    A("s_cbranch_scc1 L_end")
    A("s_load_dwordx8 s[4:11], s[0:1], 0")
    A("s_load_dwordx4 s[12:15], s[0:1], 32")
    A("s_getpc_b64 s[58:59]")
    g.label("L_pc")
    A("v_lshlrev_b32 v5, 7, v0")
    A("v_min_u32 v5, L_code_end-L_pc-4, v5")
    A("v_lshrrev_b32 v2, 6, v0")
    A("global_load_dword v47, v5, s[58:59]")
    A("v_and_b32 v1, 63, v0")
    A("s_and_b32 s36, s2, 7")
    A("v_readfirstlane_b32 s3, v2")
    A("s_lshr_b32 s37, s2, 3")
    if helpers:
        A(f"s_cmp_ge_u32 s2, {NWG}")
        A("s_cbranch_scc1 L_helper")
    A("s_mul_i32 s38, s37, 37")
    A("s_lshr_b32 s38, s38, 8")
    A("s_mul_i32 s39, s38, 7")
    A("s_sub_u32 s39, s37, s39")
    A("s_lshr_b32 s40, s36, 1")
    A("s_lshl_b32 s40, s40, 2")
    A("s_add_u32 s40, s40, s38")
    A("s_and_b32 s41, s36, 1")
    A("s_mul_i32 s41, s41, 7")
    A("s_add_u32 s41, s41, s39")
    A("v_and_b32 v2, 3, v2")
    A("v_lshrrev_b32 v3, 3, v1")
    A("v_and_b32 v4, 7, v1")
    A("s_and_b32 s43, s3, 3")
    A("s_cmp_lt_u32 s3, 4")
    A("s_cbranch_scc1 L_compute")

    def item_ops(n):
        ops = []
        if n < 7:
            slot = n % 5
            tag = ("p1", n)
            pre = [f"s_bfe_u32 s46, s57, 0x{(3<<16)|(4*n):x}", "s_lshl_b32 s49, s46, 7", f"s_add_u32 m0, s45, {slot*32768}", f"s_mul_i32 s50, s46, {64*3584}"]
            for i in range(4):
                off = f" offset:{1024*i}" if i else ""
                ops.append((pre if i == 0 else [], tag, f"buffer_load_dwordx4 v{10+i}, s[16:19], s49 offen{off} lds"))
            for i in range(4):
                off = f" offset:{1024*i}" if i else ""
                pre = [f"s_add_u32 m0, s45, {slot*32768+16384}", "s_nop 0"]
                ops.append((pre if i == 0 else [], tag, f"buffer_load_dwordx4 v{14+i}, s[20:23], s50 offen{off} lds"))
        else:
            u = n - 7
            slot = SLOT2[u]
            tag = ("w2", u)
            pre = [f"s_bfe_u32 s49, s48, 0x{(3<<16)|(4*u):x}", f"s_mul_i32 s49, s49, {64*896}", f"s_add_u32 m0, s51, {slot*32768}", f"s_add_u32 s50, s49, {32*896}"]
            for i in range(4):
                off = f" offset:{1024*i}" if i else ""
                ops.append((pre if i == 0 else [], tag, f"buffer_load_dwordx4 v{18+i}, s[24:27], s49 offen{off} lds"))
            for i in range(4):
                off = f" offset:{1024*i}" if i else ""
                pre = [f"s_add_u32 m0, s51, {slot*32768+4096}", "s_nop 0"]
                ops.append((pre if i == 0 else [], tag, f"buffer_load_dwordx4 v{18+i}, s[24:27], s50 offen{off} lds"))
        return ops
    def emit_op(op):
        pre, tag, ins = op
        for p in pre: A(p)
        g.vmem(tag, ins)
    def emit_item(n):
        for op in item_ops(n): emit_op(op)
    def w2_setup():
        A("v_mul_u32_u24 v5, 448, v2")
        A("v_add_u32 v5, v5, v3")
        A("v_mul_u32_u24 v7, 896, v5")
        A("v_bfe_u32 v6, v1, 4, 1")
        A("v_lshlrev_b32 v6, 2, v6")
        A("v_xor_b32 v8, v6, v4")
        A("v_lshl_add_u32 v18, v8, 4, v7")
        for i in range(1, 4):
            A(f"v_add_u32 v{18+i}, {i*(7168-1024)}, v18")
        A("s_lshl_b32 s44, s39, 7")
        A("s_add_u32 s24, s8, s44")
        A("s_addc_u32 s25, s9, 0")
        A("s_sub_u32 s26, 1605632, s44")
        A("s_mov_b32 s27, 0x20000")
        A("s_lshl_b32 s51, s43, 13")
        A("s_mov_b32 s47, s36")
        mod7("s47")
        A(f"s_mov_b32 s48, 0x{tabs[0]:x}")
        for r in range(1, 4):
            A(f"s_cmp_eq_u32 s38, {r}")
            A(f"s_cselect_b32 s48, 0x{tabs[r]:x}, s48")
        A("s_mul_i32 s44, s47, 0x1111111")
        A("s_add_u32 s48, s48, s44")
        A("s_add_u32 s44, s48, 0x1111111")
        A("s_and_b32 s44, s44, 0x8888888")
        A("s_lshr_b32 s44, s44, 3")
        A("s_mul_i32 s44, s44, 7")
        A("s_sub_u32 s48, s48, s44")

    groups = []
    for tok in order1.split(","):
        t = int(tok[0])
        if len(tok) == 1:
            for s_ in range(4): groups.append((t, s_, None))
        else:
            for s_ in (0, 2): groups.append((t, s_, "ab".index(tok[1])))
    NGR = len(groups); assert NGR == 28
    first_grp = {t: min(n for n, gr in enumerate(groups) if gr[0] == t) for t in range(7)}
    last_read = {t: max(n for n, gr in enumerate(groups) if gr[0] == t) for t in range(7)}

    if aprio: A(f"s_setprio {aprio}")
    A("v_lshl_add_u32 v5, v2, 5, v3")
    A("v_mul_u32_u24 v7, 896, v5")
    A("v_lshrrev_b32 v6, 1, v3")
    A("v_xor_b32 v8, v6, v4")
    A("v_lshl_add_u32 v10, v8, 4, v7")
    A("v_xor_b32 v8, 4, v8")
    A("v_lshl_add_u32 v11, v8, 4, v7")
    A(f"v_add_u32 v11, {7168-1024}, v11")
    A(f"v_add_u32 v12, {2*(7168-1024)}, v10")
    A(f"v_add_u32 v13, {2*(7168-1024)}, v11")
    A("v_lshrrev_b32 v9, 4, v1")
    A("v_and_b32 v22, 15, v1")
    A("v_lshl_add_u32 v5, v2, 4, v9")
    A("v_mul_u32_u24 v7, 3584, v5")
    A("v_lshlrev_b32 v6, 2, v9")
    A("v_xor_b32 v8, v6, v22")
    A("v_lshl_add_u32 v14, v8, 4, v7")
    for i in range(1, 4):
        A(f"v_add_u32 v{14+i}, {i*(14336-1024)}, v14")
    A("s_lshl_b32 s45, s43, 12")
    ORD = {"g4b": ["0123456", "2345601", "4560123", "6012345"],
           "m3": ["0124563", "0134562", "4560123", "4501263"],
           "m3b": ["0124563", "0314562", "4560123", "4510263"],
           "m4": ["0123456", "0234561", "4560123", "4601235"],
           "m5": ["0124563", "0134562", "4560123", "4562013"],
           "g2": ["0123456", "4560123", "0123456", "4560123"]}[rot1]
    ot = [sum(int(ch) << (4*p) for p, ch in enumerate(o)) for o in ORD]
    for o in ORD: assert sorted(o) == list("0123456")
    A("s_add_u32 s46, s38, s39")
    A("s_bitcmp1_b32 s46, 0")
    A(f"s_mov_b32 s57, 0x{ot[0]:x}")
    A(f"s_cselect_b32 s57, 0x{ot[1]:x}, s57")
    A(f"s_mov_b32 s44, 0x{ot[2]:x}")
    A(f"s_cselect_b32 s44, 0x{ot[3]:x}, s44")
    A("s_bitcmp1_b32 s46, 1")
    A("s_cselect_b32 s57, s44, s57")
    if xo == 5:
        A("s_lshr_b32 s44, s36, 1")
        A("s_add_u32 s44, s44, s36")
        A("s_bitcmp1_b32 s44, 0")
        A("s_cselect_b32 s44, 0x11, 0")
        A("s_xor_b32 s57, s57, s44")
    elif xo:
        A("s_lshr_b32 s44, s36, 1")
        if xo == 4:
            A("s_lshl_b32 s46, s36, 1")
            A("s_add_u32 s44, s44, s46")
            A("s_and_b32 s44, s44, 3")
            A(f"s_mul_i32 s44, s44, 0x1111111")
        else:
            A("s_add_u32 s44, s44, s36")
            A("s_and_b32 s44, s44, 1")
            A(f"s_mul_i32 s44, s44, 0x{0x1111111*xo:x}")
        A("s_add_u32 s57, s57, s44")
        A("s_add_u32 s44, s57, 0x1111111")
        A("s_and_b32 s44, s44, 0x8888888")
        A("s_lshr_b32 s44, s44, 3")
        A("s_mul_i32 s44, s44, 7")
        A("s_sub_u32 s57, s57, s44")
    A("s_mul_i32 s44, s40, 114688")
    A("s_lshl_b32 s49, s41, 8")
    A("s_mov_b32 s18, 114688")
    A("s_mov_b32 s19, 0x20000")
    A("s_sub_u32 s22, 1605632, s49")
    A("s_mov_b32 s23, 0x20000")
    A("s_waitcnt lgkmcnt(0)")
    A("s_add_u32 s16, s4, s44")
    A("s_addc_u32 s17, s5, 0")
    A("s_add_u32 s20, s6, s49")
    A("s_addc_u32 s21, s7, 0")
    emit_item(0)
    w2_setup()
    A(f"s_mul_i32 s44, s43, {448*896}")
    A("s_lshl_b32 s52, s37, 11")
    A("s_add_u32 s44, s44, s52")
    A("s_add_u32 s52, s8, s44")
    A("s_addc_u32 s53, s9, 0")
    emit_item(1)
    pf = [(p, k) for p in range(NP) for k in range(32)] if B else []
    def pf_batch(nb):
        for _ in range(nb):
            if not pf: return
            p, k = pf.pop(0)
            if k == 0:
                A(f"s_mul_i32 s44, s47, {64*896}")
                A("s_add_u32 s54, s52, s44")
                A("s_addc_u32 s55, s53, 0")
                A("s_add_u32 s47, s47, 1")
                A("s_cmp_eq_u32 s47, 7")
                A("s_cselect_b32 s47, 0, s47")
            A(f"s_load_dword s56, s[54:55], {k*64}")
    cnts = [int(x) for x in cnt.split(",")] if cnt else None
    allops = [(n, op) for n in aux_items[2:] for op in item_ops(n)]
    if cnts: assert sum(cnts) == len(allops)
    for t in range(7):
        g.wait_vm(("p1", t))
        A("s_barrier")
        if stamps: A(f"s_memrealtime s[{66+2*t}:{67+2*t}]")
        if t >= T0: pf_batch(B)
        if cnts:
            for _ in range(cnts[t]):
                n, op = allops.pop(0)
                if n >= 5: assert last_read[n - 5] < first_grp[t], (n, t)
                if n == 8 and w8: g.wait_vm(("w2", 0))
                emit_op(op)
            if t < 6: assert not any(n <= t + 1 for n, _ in allops)
        else:
          for n in sch[t]:
            if n >= 5:
                old = n - 5
                assert last_read[old] < first_grp[t], (n, t)
            emit_item(n)
    A("s_waitcnt vmcnt(0)")
    if stamps: A(f"s_memrealtime s[80:81]")
    A("s_barrier")
    pf_batch(len(pf))
    if stamps:
        A("s_waitcnt lgkmcnt(0)")
        for u in range(9, NST): A(f"s_memrealtime s[{64+2*u}:{65+2*u}]")
        A("s_barrier")
        A("s_branch L_dump")
    g.label("L_end")
    A("s_endpgm")
    g.vm = []
    if helpers:
        g.label("L_helper")
        A("s_sub_u32 s38, s37, 28")
        A(f"s_mul_i32 s38, s38, {448*896}")
        A(f"s_mul_i32 s39, s3, {56*128}")
        A("s_add_u32 s38, s38, s39")
        A("v_min_u32 v4, 55, v1")
        A("v_lshlrev_b32 v4, 7, v4")
        A(f"s_add_u32 s47, s36, {HO}")
        mod7("s47")
        A("s_mov_b32 s26, 1605632")
        A("s_mov_b32 s27, 0x20000")
        A("s_waitcnt lgkmcnt(0)")
        A("s_mov_b32 s24, s8")
        A("s_mov_b32 s25, s9")
        if hx:
            A("s_mov_b32 s16, s4")
            A("s_mov_b32 s17, s5")
            A("s_mov_b32 s18, 1835008")
            A("s_mov_b32 s19, 0x20000")
            A("v_and_b32 v7, 7, v1")
            A("v_mul_u32_u24 v7, 896, v7")
            A("v_lshrrev_b32 v8, 3, v1")
            A("v_min_u32 v8, 2, v8")
            if hx == 1:
                A("v_lshl_add_u32 v7, v8, 8, v7")
                A("s_bfe_u32 s50, s36, 0x10001")
                A("s_add_u32 s50, s50, 1")
                A("s_lshl_b32 s50, s50, 7")
            else:
                A("v_mul_u32_u24 v8, v8, v8")
                A("v_lshl_add_u32 v7, v8, 7, v7")
                A("s_movk_i32 s50, 256")
            A("s_lshl_b32 s49, s36, 2")
            A("s_add_u32 s49, s49, s37")
            A("s_sub_u32 s49, s49, 28")
            A("s_lshl_b32 s49, s49, 3")
            A("s_add_u32 s49, s49, s3")
            A(f"s_mul_i32 s49, s49, {8*896}")
            A("s_add_u32 s49, s49, s50")
            A("buffer_load_dword v6, v7, s[16:19], s49 offen")
        for u in range(HP):
            A(f"s_mul_i32 s49, s47, {64*896}")
            A("s_add_u32 s49, s49, s38")
            if u == 0:
                for k in range(ramp):
                    A(f"s_cmp_lg_u32 s3, {k}")
                    A(f"s_cbranch_scc1 L_hr{k}")
                    A("buffer_load_dword v6, v4, s[24:27], s49 offen")
                    A("s_waitcnt vmcnt(0)")
                    g.label(f"L_hr{k}")
                    A("s_barrier")
            A("buffer_load_dword v6, v4, s[24:27], s49 offen")
            if hser: A("s_waitcnt vmcnt(0)")
            A("s_add_u32 s47, s47, 1")
            A("s_cmp_eq_u32 s47, 7")
            A("s_cselect_b32 s47, 0, s47")
            if stamps: A(f"s_memrealtime s[{66+2*u}:{67+2*u}]")
        if hh:
            A("v_mov_b32 v36, 0")
            A("global_load_dword v32, v36, s[12:13] sc1")
            A("s_sub_u32 s38, s37, 28")
            A("s_mov_b32 s47, s36")
            mod7("s47")
            A(f"s_mov_b32 s48, 0x{tabs[0]:x}")
            for r in range(1, 4):
                A(f"s_cmp_eq_u32 s38, {r}")
                A(f"s_cselect_b32 s48, 0x{tabs[r]:x}, s48")
            A("s_mul_i32 s44, s47, 0x1111111")
            A("s_add_u32 s48, s48, s44")
            A("s_add_u32 s44, s48, 0x1111111")
            A("s_and_b32 s44, s44, 0x8888888")
            A("s_lshr_b32 s44, s44, 3")
            A("s_mul_i32 s44, s44, 7")
            A("s_sub_u32 s48, s48, s44")
            A("s_and_b32 s43, s3, 3")
            A("s_and_b32 s44, s3, 4")
            A("s_lshr_b32 s48, s48, s44")
            A("s_lshr_b32 s45, s3, 2")
            A("s_lshl_b32 s42, s36, 2")
            A("s_add_u32 s42, s42, s38")
            A("s_mul_i32 s56, s42, 112")
            A("s_mul_i32 s57, s43, 28")
            A("s_add_u32 s56, s56, s57")
            A("s_lshl_b32 s56, s56, 11")
            A("s_lshl_b32 s57, s42, 2")
            A("s_add_u32 s57, s57, s43")
            A("s_lshl_b32 s57, s57, 7")
            A(f"s_add_u32 s57, s57, {FLAG_OFF}")
            A("s_add_u32 s6, s14, s57")
            A("s_addc_u32 s7, s15, 0")
            A("s_mov_b32 s28, s14")
            A("s_mov_b32 s29, s15")
            A(f"s_mov_b32 s30, {FLAG_OFF}")
            A("s_mov_b32 s31, 0x20000")
            A("v_lshlrev_b32 v4, 7, v1")
            A("s_waitcnt vmcnt(0)")
            A("v_readfirstlane_b32 s60, v32")
            A("s_mov_b32 s46, 0")
            A("s_nop 2")
            A("s_cmp_eq_u32 s60, 0")
            A("s_cbranch_scc1 L_hh_done")
            g.label("L_hh_next")
            A("s_and_b32 s49, s48, 7")
            A("s_lshl_b32 s50, s49, 2")
            g.label("L_hh_poll")
            A("s_load_dword s51, s[6:7], s50 glc")
            A("s_add_u32 s46, s46, 1")
            A("s_cmp_ge_u32 s46, 64")
            A("s_waitcnt lgkmcnt(0)")
            A("s_cbranch_scc1 L_hh_done")
            A("s_cmp_lg_u32 s51, s60")
            A("s_cbranch_scc1 L_hh_poll")
            A("s_lshl_b32 s49, s49, 13")
            A("s_add_u32 s49, s49, s56")
            A("buffer_load_dword v6, v4, s[28:31], s49 offen sc1")
            A("s_lshr_b32 s48, s48, 8")
            A("s_add_u32 s45, s45, 2")
            A(f"s_cmp_lt_u32 s45, {hh}")
            A("s_cbranch_scc1 L_hh_next")
            g.label("L_hh_done")
        if stamps:
            A("s_waitcnt vmcnt(0)")
            for u in range(HP, NST-1): A(f"s_memrealtime s[{66+2*u}:{67+2*u}]")
            A("s_branch L_dump")
        A("s_endpgm")

    g.label("L_compute")
    A("s_memrealtime s[60:61]")
    if prio: A(f"s_setprio {prio}")
    A("s_waitcnt lgkmcnt(0)")
    stamp("karg")
    A("v_mov_b32 v36, 0")
    A("s_or_b32 s44, s2, s43")
    A("s_cmp_lg_u32 s44, 0")
    A("s_cbranch_scc1 L_noepoch")
    A("s_or_b32 s60, s60, 1")
    A("s_atomic_swap s60, s[12:13], 0")
    g.label("L_noepoch")
    w2_setup()
    A("s_lshl_b32 s42, s36, 2")
    A("s_add_u32 s42, s42, s38")
    A("s_mov_b32 s28, s14")
    A("s_mov_b32 s29, s15")
    A(f"s_mov_b32 s30, {FLAG_OFF}")
    A("s_mov_b32 s31, 0x20000")
    A("s_mov_b32 s32, s10")
    A("s_mov_b32 s33, s11")
    A("s_mov_b32 s34, 1835008")
    A("s_mov_b32 s35, 0x20000")
    A("v_and_b32 v2, 31, v1")
    A("v_lshrrev_b32 v3, 5, v1")
    A("v_bfe_u32 v4, v1, 1, 3")
    A("v_xor_b32 v4, v4, v3")
    A("v_lshlrev_b32 v4, 4, v4")
    A("v_lshl_add_u32 v4, v2, 7, v4")
    A("s_lshr_b32 s52, s43, 1")
    A("s_and_b32 s53, s43, 1")
    A("s_lshl_b32 s44, s52, 13")
    A("v_add_u32 v22, s44, v4")
    for s in range(1, 4):
        A(f"v_xor_b32 v{22+s}, {s<<5}, v22")
    A("v_bfe_u32 v5, v1, 2, 2")
    A("v_lshl_add_u32 v6, v3, 3, v5")
    A("v_lshlrev_b32 v6, 8, v6")
    A("v_and_b32 v7, 3, v1")
    A("v_lshlrev_b32 v7, 3, v7")
    A("v_bfe_u32 v8, v1, 4, 1")
    A("v_lshl_add_u32 v7, v8, 5, v7")
    A("s_lshl_b32 s44, s53, 1")
    A("v_xor_b32 v9, s44, v5")
    A("v_lshl_add_u32 v9, v9, 6, v7")
    A("v_add_u32 v26, v9, v6")
    A("v_add_u32 v26, 16384, v26")
    A("v_xor_b32 v27, 64, v26")
    A("v_lshl_add_u32 v6, v3, 2, v5")
    A("v_lshlrev_b32 v6, 7, v6")
    A("v_lshrrev_b32 v9, 1, v5")
    A("v_xor_b32 v9, s52, v9")
    A("v_lshl_add_u32 v9, v9, 6, v7")
    A("v_add3_u32 v28, v9, v6, s51")
    A("v_xor_b32 v29, 64, v28")
    A("v_add_u32 v40, 0x10000, v28")
    A("v_add_u32 v41, 0x10000, v29")
    A("v_add_u32 v42, 0x20000, v28")
    A("v_add_u32 v43, 0x20000, v29")
    A("v_lshlrev_b32 v30, 4, v1")
    A("s_lshl_b32 s44, s53, 10")
    A("v_add_u32 v44, s44, v30")
    A("v_xor_b32 v45, 0x400, v44")
    A("s_lshl_b32 s44, s40, 1")
    A("s_add_u32 s44, s44, s52")
    A("s_mul_i32 s54, s44, 112")
    A("s_lshl_b32 s55, s41, 1")
    A("s_add_u32 s55, s55, s53")
    A("s_lshl_b32 s56, s55, 2")
    A("s_add_u32 s54, s54, s56")
    A("s_lshl_b32 s54, s54, 11")
    A("s_add_u32 s98, s54, 4096")
    A("s_mul_i32 s56, s55, 37")
    A("s_lshr_b32 s56, s56, 8")
    A("s_mul_i32 s57, s56, 7")
    A("s_sub_u32 s57, s55, s57")
    A("s_lshl_b32 s44, s44, 2")
    A("s_add_u32 s44, s44, s56")
    A("s_lshl_b32 s44, s44, 7")
    A("s_lshl_b32 s57, s57, 2")
    A("s_add_u32 s55, s44, s57")
    A(f"s_add_u32 s55, s55, {FLAG_OFF}")
    A("s_add_u32 s4, s14, s55")
    A("s_addc_u32 s5, s15, 0")
    A("s_mul_i32 s56, s42, 112")
    A("s_mul_i32 s57, s43, 28")
    A("s_add_u32 s56, s56, s57")
    A("s_lshl_b32 s56, s56, 11")
    A("s_lshl_b32 s57, s42, 2")
    A("s_add_u32 s57, s57, s43")
    A("s_lshl_b32 s57, s57, 7")
    A(f"s_add_u32 s57, s57, {FLAG_OFF}")
    A("s_add_u32 s6, s14, s57")
    A("s_addc_u32 s7, s15, 0")
    A("s_lshl_b32 s44, s42, 6")
    A("s_lshl_b32 s58, s53, 5")
    A("s_add_u32 s44, s44, s58")
    A("s_mul_i32 s44, s44, 896")
    A("s_lshl_b32 s58, s39, 7")
    A("s_add_u32 s44, s44, s58")
    A("s_lshl_b32 s58, s52, 6")
    A("s_add_u32 s99, s44, s58")
    A("v_mul_u32_u24 v38, 896, v2")
    A("v_lshl_add_u32 v38, v3, 4, v38")
    A("v_add_u32 v10, s51, v30")
    A("v_add_u32 v11, 0x10000, v10")
    A("v_xor_b32 v12, 0x2000, v10")
    A("v_xor_b32 v13, 0x4000, v11")
    A("v_xor_b32 v14, 0x6000, v11")
    A("s_waitcnt lgkmcnt(0)")

    ACC = 48
    def acc(i, j):
        b = ACC + (i*2+j)*16
        return f"v[{b}:{b+15}]"
    FB = 112; PK = 160; SB = 192
    basex = [0]*4; basew = [0]*2
    def rebase(reg, cur, want):
        if cur != want:
            A(f"v_add_u32 v{reg}, 0x{(want - cur) & 0xffffffff:x}, v{reg}")
        return want
    synced = set()
    def chunk_sync(t):
        if g.lg:
            A("s_waitcnt lgkmcnt(0)"); g.lg = []
        A("s_barrier")
        synced.add(t)
        if t in (0, 3, 6): stamp(f"c{t}")
    def plan(n):
        t, s_, i = groups[n]
        slot = t % 5
        want = (slot // 2) * 65536
        so = slot*32768 - want
        b0 = FB + (n % 2)*24
        rd = []
        def W(ss, ii, reg):
            basew[ii] = rebase(26+ii, basew[ii], want)
            for jj in range(2):
                rd.append((("f", n, reg), f"ds_read_b64_tr_b16 v[{reg+2*jj}:{reg+2*jj+1}], v{26+ii} offset:{so + ss*4096 + jj*1024}"))
        def X(ss, jj, reg):
            basex[ss] = rebase(22+ss, basex[ss], want)
            rd.append((("f", n, reg), f"ds_read_b128 v[{reg}:{reg+3}], v{22+ss} offset:{so + jj*4096}"))
        if i is None:
            W(s_, 0, b0); X(s_, 0, b0+4); X(s_, 1, b0+8); W(s_, 1, b0+12)
            mf = [(0, 0, b0, b0+4, b0+4), (0, 1, b0, b0+8, b0+8), (1, 1, b0+12, b0+8, b0+12), (1, 0, b0+12, b0+4, b0+12)]
        else:
            W(s_, i, b0); X(s_, 0, b0+4); X(s_, 1, b0+8); W(s_+1, i, b0+12); X(s_+1, 0, b0+16); X(s_+1, 1, b0+20)
            mf = [(i, 0, b0, b0+4, b0+4), (i, 1, b0, b0+8, b0+8), (i, 0, b0+12, b0+16, b0+16), (i, 1, b0+12, b0+20, b0+20)]
        return rd, mf
    def epi_ops(i):
        out = []
        for j in range(2):
            for half in range(2):
                src = ACC + (i*2+j)*16 + half*8
                dst = PK + ((i*2+j)*2+half)*4
                for e in range(4):
                    out.append(("v", f"v_cvt_pk_bf16_f32 v{dst+e}, v{src+2*e}, v{src+2*e+1}"))
                for e in range(4):
                    out.append(("v", f"v_pk_max_i16 v{dst+e}, v{dst+e}, 0"))
                off = (2*i+half)*2048 + j*1024
                sreg = "s54" if off < 4096 else "s98"
                o = off % 4096
                out.append(("m", f"buffer_store_dwordx4 v[{dst}:{dst+3}], v30, s[28:31], {sreg} offen" + (f" offset:{o}" if o else "") + " sc1"))
        return out
    def emit_epi(op):
        if op[0] == "v": A(op[1])
        else: g.vmem("hst", op[1])
    last_i0 = max(n for n, (t, s_, i) in enumerate(groups) if i in (None, 0))
    epi0 = []
    started = set()
    chunk_sync(0)
    rd, mf = plan(0)
    for tag, ins in rd: g.ds(tag, ins)
    for n in range(NGR):
        rdn = []; mfn = None
        if n + 1 < NGR:
            tn = groups[n+1][0]
            if tn not in synced: chunk_sync(tn)
            rdn, mfn = plan(n + 1)
        if n == 8:
            g.vmem("epoch", "global_load_dword v32, v36, s[12:13] sc1")
        if n == last_i0 + 2 and last_i0 < NGR - 1:
            epi0 = epi_ops(0)
        for k, (i, j, a_, b_, wt) in enumerate(mf):
            g.wait_lg(("f", n, wt))
            if k == 0:
                for _ in range(3):
                    if rdn: tag, ins = rdn.pop(0); g.ds(tag, ins)
            c = acc(i, j) if (i, j) in started else "0"
            started.add((i, j))
            A(f"v_mfma_f32_32x32x16_bf16 {acc(i,j)}, v[{a_}:{a_+3}], v[{b_}:{b_+3}], {c}")
            if k <= 1:
                for _ in range(3):
                    if rdn: tag, ins = rdn.pop(0); g.ds(tag, ins)
            for _ in range(5 if k >= 1 else 2):
                if epi0: emit_epi(epi0.pop(0))
        assert not rdn
        mf = mfn
    stamp("p1end")
    npad = len(epi0)
    while epi0: emit_epi(epi0.pop(0))
    if last_i0 == NGR - 1:
        A("s_nop 8")
        for op in epi_ops(0): emit_epi(op)
    elif last_i0 + 2 >= NGR:
        A("s_nop 7")
        for op in epi_ops(0): emit_epi(op)
    else:
        A(f"s_nop {max(0, 10 - npad)}")
    for op in epi_ops(1): emit_epi(op)
    stamp("hst_iss")
    A("s_barrier")
    next_item = 7 + npre
    emit_item(next_item); next_item += 1
    def w2addr(u, i):
        slot = SLOT2[u]
        return [28, 40, 42][slot // 2] + i, (slot % 2)*32768
    stashed = set()
    def stash(u):
        if u in stashed: return
        stashed.add(u)
        g.wait_vm(("w2", u))
        for s in range(4):
            for i in range(2):
                reg, so = w2addr(u, i)
                for jj in range(2):
                    a = SB + (u*4+s)*8 + i*4 + jj*2
                    g.ds(("stash", u), f"ds_read_b64_tr_b16 v[{a}:{a+1}], v{reg} offset:{so + s*2048 + jj*1024}")
    for u in range(min(npre, 2)): stash(u)
    g.wait_vm("epoch")
    A("v_cmp_ne_u32 vcc, 0, v32")
    A("s_cbranch_vccnz L_epoch_ok")
    A("s_mov_b32 s44, 0")
    g.label("L_epoch_spin")
    A("global_load_dword v32, v36, s[12:13] sc1")
    A("s_waitcnt vmcnt(0)")
    A("s_add_u32 s44, s44, 1")
    A("s_cmp_ge_u32 s44, 0x40000")
    A("s_cbranch_scc1 L_epoch_ok")
    A("v_cmp_eq_u32 vcc, 0, v32")
    A("s_cbranch_vccnz L_epoch_spin")
    g.label("L_epoch_ok")
    A("v_readfirstlane_b32 s60, v32")
    A("v_readfirstlane_b32 s61, v32")
    A("s_nop 4")
    g.wait_vm("hst")
    stamp("hst_done")
    A("s_atomic_swap s60, s[4:5], 0")
    while next_item <= 13:
        if next_item == 10: stash(0)
        if next_item == 11: stash(1)
        if next_item >= 12: g.wait_lg(("stash", next_item - 12))
        if next_item == 13:
            A("s_load_dwordx8 s[16:23], s[6:7], 0 glc")
        emit_item(next_item); next_item += 1
    stamp("w2iss")
    A("s_mov_b32 s44, 0")
    A("s_branch L_poll_chk")
    g.label("L_poll")
    A("s_load_dwordx8 s[16:23], s[6:7], 0 glc")
    A("s_add_u32 s44, s44, 1")
    A("s_cmp_ge_u32 s44, 0x80000")
    A("s_cbranch_scc1 L_flags_to")
    g.label("L_poll_chk")
    A("s_waitcnt lgkmcnt(0)")
    g.lg = []
    A("s_cmp_lg_u64 s[16:17], s[60:61]")
    A("s_cbranch_scc1 L_poll")
    A("s_cmp_lg_u64 s[18:19], s[60:61]")
    A("s_cbranch_scc1 L_poll")
    A("s_cmp_lg_u64 s[20:21], s[60:61]")
    A("s_cbranch_scc1 L_poll")
    A("s_cmp_lg_u32 s22, s60")
    A("s_cbranch_scc1 L_poll")
    g.label("L_flags_to")
    A("s_waitcnt lgkmcnt(0)")
    stamp("flags")
    HB = 112; HN = 6
    WB = 160; WN = 4
    assert HD < HN
    def hload(step):
        u, s = divmod(step, 4)
        if s == 0:
            A(f"s_bfe_u32 s58, s48, 0x{(3<<16)|(4*u):x}")
            A("s_lshl_b32 s58, s58, 13")
            A("s_add_u32 s58, s58, s56")
            A("s_add_u32 s59, s58, 4096")
        res = []
        for j in range(2):
            b = HB + (step % HN)*8 + j*4
            off = s*2048
            sreg = "s58" if off < 4096 else "s59"
            o = off % 4096
            res.append((("h", step, j), f"buffer_load_dwordx4 v[{b}:{b+3}], v{44+j}, s[28:31], {sreg} offen" + (f" offset:{o}" if o else "") + " sc1"))
        return res
    def w2reads(step):
        u, s = divmod(step, 4)
        if u < 2: return
        if s == 0: g.wait_vm(("w2", u))
        for i in range(2):
            reg, so = w2addr(u, i)
            for jj in range(2):
                b = WB + (step % WN)*8 + i*4 + jj*2
                g.ds(("wf", step), f"ds_read_b64_tr_b16 v[{b}:{b+1}], v{reg} offset:{so + s*2048 + jj*1024}")
    for st in range(HD):
        for tag, ins in hload(st): g.vmem(tag, ins)
    WD = 2
    def mf2(st, i, j):
        c = "0" if st == 0 else acc(i, j)
        hb = HB + (st % HN)*8 + j*4
        b = (SB + st*8 if st < 8 else WB + (st % WN)*8) + i*4
        A(f"v_mfma_f32_32x32x16_bf16 {acc(i,j)}, v[{b}:{b+3}], v[{hb}:{hb+3}], {c}")
    def redw(q, p):
        b = ACC + q*16 + p*4
        A(f"ds_write_b128 v{10 + q//2}, v[{b}:{b+3}] offset:{(q%2)*32768 + p*1024}")
    for st in range(26):
        w2reads(st + WD)
        g.wait_vm(("h", st, 0))
        if st == 0: stamp("h0")
        g.wait_lg(("wf", st))
        lds = hload(st + HD) if st + HD < 28 else []
        for k, (i, j) in enumerate([(0, 0), (1, 0), (1, 1), (0, 1)]):
            if j == 1: g.wait_vm(("h", st, 1))
            mf2(st, i, j)
            if k % 2 == 0 and lds:
                tag, ins = lds.pop(0)
                g.vmem(tag, ins)
    g.wait_lg(("wf", 27))
    g.wait_vm(("h", 26, 0)); mf2(26, 1, 0)
    g.wait_vm(("h", 26, 1)); mf2(26, 1, 1); mf2(26, 0, 1)
    g.wait_vm(("h", 27, 0)); mf2(27, 1, 0)
    g.wait_vm(("h", 27, 1)); mf2(27, 1, 1); mf2(27, 0, 1)
    mf2(26, 0, 0)
    stamp("p2end")
    A("s_nop 8")
    for p in range(4): redw(2, p)
    mf2(27, 0, 0)
    for p in range(4): redw(3, p)
    for p in range(4): redw(1, p)
    A("s_waitcnt lgkmcnt(0)")
    A("s_barrier")
    g.lg = []
    RB = 192
    for p in range(4):
        for q in range(1, 4):
            b = RB + (q-1)*16 + p*4
            g.ds(("red", p), f"ds_read_b128 v[{b}:{b+3}], v{11+q} offset:{(q%2)*32768 + p*1024}")
    for p in range(4):
        g.wait_lg(("red", p))
        for r in range(4*p, 4*p+4):
            A(f"v_add_f32 v{RB+r}, v{RB+r}, v{RB+16+r}")
            A(f"v_add_f32 v{ACC+r}, v{ACC+r}, v{RB+32+r}")
        for r in range(4*p, 4*p+4):
            A(f"v_add_f32 v{ACC+r}, v{ACC+r}, v{RB+r}")
        A(f"v_cvt_pk_bf16_f32 v{240+2*p}, v{ACC+4*p}, v{ACC+4*p+1}")
        A(f"v_cvt_pk_bf16_f32 v{241+2*p}, v{ACC+4*p+2}, v{ACC+4*p+3}")
        if p % 2 == 1:
            b = 240 + 2*(p-1)
            A("s_nop 1")
            A(f"v_permlane32_swap_b32 v{b}, v{b+2}")
            A(f"v_permlane32_swap_b32 v{b+1}, v{b+3}")
            A(f"buffer_store_dwordx4 v[{b}:{b+3}], v38, s[32:35], s99 offen" + (" offset:32" if p == 3 else ""))
    if probe is not None:
        stamp("st_iss")
        A("s_waitcnt vmcnt(0)")
        stamp("st_done")
        A("s_waitcnt lgkmcnt(0)")
        A("s_add_u32 s96, s96, 2000")
        g.label("L_dly")
        A("s_memrealtime s[100:101]")
        A("s_waitcnt lgkmcnt(0)")
        A("s_sub_u32 s100, s100, s96")
        A("s_cmp_lt_i32 s100, 0")
        A("s_cbranch_scc1 L_dly")
    if stamps:
        stamp("st_iss")
        A("s_waitcnt vmcnt(0)")
        stamp("st_done")
        g.label("L_dump")
        A("s_memrealtime s[94:95]")
        A("s_waitcnt lgkmcnt(0)")
        A("s_lshl_b32 s44, s2, 3")
        A("s_add_u32 s44, s44, s3")
        A("s_lshl_b32 s44, s44, 8")
        A(f"s_add_u32 s44, s44, 0x{STAMP_OFF:x}")
        A("v_mov_b32 v2, s44")
        A("s_mov_b64 exec, 1")
        regs = [62] + [64+2*i for i in range(NST)] + [94]
        for i, r in enumerate(regs):
            A(f"v_mov_b32 v4, s{r}")
            A(f"v_mov_b32 v5, s{r+1}")
            A(f"global_store_dwordx2 v2, v[4:5], s[14:15] offset:{8*i}")
            A("s_waitcnt vmcnt(0)")
    A("s_endpgm")
    g.label("L_code_end")
    hdr = HEADER_COMMENTS + f"; @launch grid=({GRID},1,1) block=(512,1,1) lds=163840\n"
    hdr += f'''.amdgcn_target "amdgcn-amd-amdhsa--gfx950"
.text
.globl {KNAME}
.p2align 8
.type {KNAME},@function
{KNAME}:
'''
    ftr = f'''
.section .rodata,"a"
.p2align 6
.amdhsa_kernel {KNAME}
  .amdhsa_next_free_vgpr 256
  .amdhsa_next_free_sgpr 102
  .amdhsa_accum_offset 256
  .amdhsa_group_segment_fixed_size 0
  .amdhsa_kernarg_size 48
  .amdhsa_user_sgpr_count 2
  .amdhsa_user_sgpr_kernarg_segment_ptr 1
  .amdhsa_system_sgpr_workgroup_id_x 1
.end_amdhsa_kernel
'''
    return hdr + "\n".join(g.L) + ftr, names

if __name__ == "__main__":
    ap = argparse.ArgumentParser()
    ap.add_argument("-o", default="k7.s")
    ap.add_argument("--stamps", action="store_true")
    ap.add_argument("--probe", type=int, default=None)
    ap.add_argument("--rot1", default="m3")
    ap.add_argument("--order1", default="0,1,2,3,4a,5a,6a,4b,5b,6b")
    ap.add_argument("--sched", default="2,3,45,67,,,")
    for k, d in (("HD", 5), ("NP", 0), ("B", 0), ("T0", 1), ("prio", 1), ("aprio", 0), ("helpers", 0), ("ramp", 1), ("HP", 7), ("xo", 1), ("HO", 0), ("hser", 0), ("tabm", 1), ("hh", 0), ("w8", 0), ("hx", 0)):
        ap.add_argument("--" + k, type=int, default=d)
    ap.add_argument("--cnt", default="")
    a = ap.parse_args()
    kw = vars(a).copy(); o = kw.pop("o")
    s, n = gen(**kw)
    open(o, "w").write(s)
    print("written", o, "names", ",".join(n), "lines", s.count("\n"))
```

```python
import sys, argparse
sys.path.insert(0, "gen")
from k1 import G, KNAME, HEADER_COMMENTS

def gen(stamps=False, probe=None, rot1="g4b", HD=5, order1="0,1,2,3,4a,5a,6a,4b,5b,6b",
        sched="2,3,45,6,7,8,", NP=3, B=16, T0=1, prio=1, aprio=0, helpers=0, ramp=1, HP=7, xo=0, HO=0, hser=0, tabm=1, hh=0, w8=0, hx=0, sw1=0, cph=0, cnt=""):
    g = G(); A = g.A
    NWG = 224
    GRID = 256 if helpers else 224
    FLAG_OFF = 0x800000
    STAMP_OFF = 0x8000000
    NST = 14
    g.np = 0
    names = []
    def stamp(name):
        names.append(name)
        if probe is not None:
            if g.np == probe:
                A("s_memrealtime s[96:97]")
            g.np += 1
        if stamps:
            A(f"s_memrealtime s[{64+2*g.nst}:{65+2*g.nst}]")
            g.nst += 1
            assert g.nst <= NST
    def mod7(reg, tmp="s44"):
        A(f"s_cmp_ge_u32 {reg}, 7")
        A(f"s_cselect_b32 {tmp}, 7, 0")
        A(f"s_sub_u32 {reg}, {reg}, {tmp}")
    SLOT2 = [2, 3, 4, 0, 1, 2, 3]
    sch = [[int(ch) for ch in tok] for tok in sched.split(",")]
    assert len(sch) == 7
    aux_items = [0, 1] + [n for tok in sch for n in tok]
    assert aux_items == list(range(len(aux_items))) and len(aux_items) >= 7
    npre = len(aux_items) - 7
    def otab(r):
        pf = list(range(NP))
        rest = list(range(NP, 7))
        seq = []
        if NP == 0 and tabm == 2:
            return [r, 4, (r+1) % 4, (r+2) % 4, 5, (r+3) % 4, 6]
        if NP == 0 and tabm == 4:
            return [r % 3, 3, (r+1) % 3, 4, (r+2) % 3, 5, 6]
        if NP == 0 and tabm == 5:
            return [r % 2, 2, (r+1) % 2, 3, 4, 5, 6]
        if NP == 0 and tabm == 3:
            return [4, r, 5, (r+1) % 4, (r+2) % 4, (r+3) % 4, 6]
        if NP == 0:
            l2 = 4 + r % 3
            return [r, l2] + [(r + k) % 4 for k in (1, 2, 3)] + [4 + (l2 - 4 + k) % 3 for k in (1, 2)]
        rr = [rest[(r + k) % len(rest)] for k in range(len(rest))] if rest else []
        seq = pf[:npre] + rr[:1] + pf[npre:] + rr[1:]
        assert sorted(seq) == list(range(7))
        return seq
    tabs = [sum(o << (4*p) for p, o in enumerate(otab(r))) for r in range(4)]

    if stamps:
        A("s_memrealtime s[62:63]")
    stamp("start")
    A(f"s_cmp_ge_u32 s2, {GRID}")
    A("s_cbranch_scc1 L_end")
    A("s_load_dwordx8 s[4:11], s[0:1], 0")
    A("s_load_dwordx4 s[12:15], s[0:1], 32")
    A("s_getpc_b64 s[58:59]")
    g.label("L_pc")
    A("v_lshlrev_b32 v5, 7, v0")
    A("v_min_u32 v5, L_code_end-L_pc-4, v5")
    A("v_lshrrev_b32 v2, 6, v0")
    if cph:
        A(f"s_cmp_lt_u32 s2, {NWG}")
        A("s_cbranch_scc1 L_nocp")
    A("global_load_dword v47, v5, s[58:59]")
    if cph: g.label("L_nocp")
    A("v_and_b32 v1, 63, v0")
    A("s_and_b32 s36, s2, 7")
    A("v_readfirstlane_b32 s3, v2")
    A("s_lshr_b32 s37, s2, 3")
    if helpers:
        A(f"s_cmp_ge_u32 s2, {NWG}")
        A("s_cbranch_scc1 L_helper")
    A("s_mul_i32 s38, s37, 37")
    A("s_lshr_b32 s38, s38, 8")
    A("s_mul_i32 s39, s38, 7")
    A("s_sub_u32 s39, s37, s39")
    A("s_lshr_b32 s40, s36, 1")
    A("s_lshl_b32 s40, s40, 2")
    A("s_add_u32 s40, s40, s38")
    A("s_and_b32 s41, s36, 1")
    A("s_mul_i32 s41, s41, 7")
    A("s_add_u32 s41, s41, s39")
    A("v_and_b32 v2, 3, v2")
    A("v_lshrrev_b32 v3, 3, v1")
    A("v_and_b32 v4, 7, v1")
    A("s_and_b32 s43, s3, 3")
    A("s_cmp_lt_u32 s3, 4")
    A("s_cbranch_scc1 L_compute")

    def item_ops(n):
        ops = []
        if n < 7:
            slot = n % 5
            tag = ("p1", n)
            pre = [f"s_bfe_u32 s46, s57, 0x{(3<<16)|(4*n):x}", "s_lshl_b32 s49, s46, 7", f"s_add_u32 m0, s45, {slot*32768}", f"s_mul_i32 s50, s46, {64*3584}"]
            for i in range(4):
                off = f" offset:{1024*i}" if i else ""
                ops.append((pre if i == 0 else [], tag, f"buffer_load_dwordx4 v{10+i}, s[16:19], s49 offen{off} lds"))
            for i in range(4):
                off = f" offset:{1024*i}" if i else ""
                pre = [f"s_add_u32 m0, s45, {slot*32768+16384}", "s_nop 0"]
                ops.append((pre if i == 0 else [], tag, f"buffer_load_dwordx4 v{14+i}, s[20:23], s50 offen{off} lds"))
            if (sw1 >> n) & 1:
                p0 = ops[0][0]; p4 = ops[4][0]
                first = [([p0[0], p0[1], p4[0], p0[3]], tag, ops[4][2])] + ops[5:8]
                second = [([p0[2], "s_nop 0"], tag, ops[0][2])] + ops[1:4]
                ops = first + second
        else:
            u = n - 7
            slot = SLOT2[u]
            tag = ("w2", u)
            pre = [f"s_bfe_u32 s49, s48, 0x{(3<<16)|(4*u):x}", f"s_mul_i32 s49, s49, {64*896}", f"s_add_u32 m0, s51, {slot*32768}", f"s_add_u32 s50, s49, {32*896}"]
            for i in range(4):
                off = f" offset:{1024*i}" if i else ""
                ops.append((pre if i == 0 else [], tag, f"buffer_load_dwordx4 v{18+i}, s[24:27], s49 offen{off} lds"))
            for i in range(4):
                off = f" offset:{1024*i}" if i else ""
                pre = [f"s_add_u32 m0, s51, {slot*32768+4096}", "s_nop 0"]
                ops.append((pre if i == 0 else [], tag, f"buffer_load_dwordx4 v{18+i}, s[24:27], s50 offen{off} lds"))
        return ops
    def emit_op(op):
        pre, tag, ins = op
        for p in pre: A(p)
        g.vmem(tag, ins)
    def emit_item(n):
        for op in item_ops(n): emit_op(op)
    def w2_setup():
        A("v_mul_u32_u24 v5, 448, v2")
        A("v_add_u32 v5, v5, v3")
        A("v_mul_u32_u24 v7, 896, v5")
        A("v_bfe_u32 v6, v1, 4, 1")
        A("v_lshlrev_b32 v6, 2, v6")
        A("v_xor_b32 v8, v6, v4")
        A("v_lshl_add_u32 v18, v8, 4, v7")
        for i in range(1, 4):
            A(f"v_add_u32 v{18+i}, {i*(7168-1024)}, v18")
        A("s_lshl_b32 s44, s39, 7")
        A("s_add_u32 s24, s8, s44")
        A("s_addc_u32 s25, s9, 0")
        A("s_sub_u32 s26, 1605632, s44")
        A("s_mov_b32 s27, 0x20000")
        A("s_lshl_b32 s51, s43, 13")
        A("s_mov_b32 s47, s36")
        mod7("s47")
        A(f"s_mov_b32 s48, 0x{tabs[0]:x}")
        for r in range(1, 4):
            A(f"s_cmp_eq_u32 s38, {r}")
            A(f"s_cselect_b32 s48, 0x{tabs[r]:x}, s48")
        A("s_mul_i32 s44, s47, 0x1111111")
        A("s_add_u32 s48, s48, s44")
        A("s_add_u32 s44, s48, 0x1111111")
        A("s_and_b32 s44, s44, 0x8888888")
        A("s_lshr_b32 s44, s44, 3")
        A("s_mul_i32 s44, s44, 7")
        A("s_sub_u32 s48, s48, s44")

    groups = []
    for tok in order1.split(","):
        t = int(tok[0])
        if len(tok) == 1:
            for s_ in range(4): groups.append((t, s_, None))
        else:
            for s_ in (0, 2): groups.append((t, s_, "ab".index(tok[1])))
    NGR = len(groups); assert NGR == 28
    first_grp = {t: min(n for n, gr in enumerate(groups) if gr[0] == t) for t in range(7)}
    last_read = {t: max(n for n, gr in enumerate(groups) if gr[0] == t) for t in range(7)}

    g.C("================= waves 4..7: LDS-DMA streaming =================")
    if aprio: A(f"s_setprio {aprio}")
    A("v_lshl_add_u32 v5, v2, 5, v3")
    A("v_mul_u32_u24 v7, 896, v5")
    A("v_lshrrev_b32 v6, 1, v3")
    A("v_xor_b32 v8, v6, v4")
    A("v_lshl_add_u32 v10, v8, 4, v7")
    A("v_xor_b32 v8, 4, v8")
    A("v_lshl_add_u32 v11, v8, 4, v7")
    A(f"v_add_u32 v11, {7168-1024}, v11")
    A(f"v_add_u32 v12, {2*(7168-1024)}, v10")
    A(f"v_add_u32 v13, {2*(7168-1024)}, v11")
    A("v_lshrrev_b32 v9, 4, v1")
    A("v_and_b32 v22, 15, v1")
    A("v_lshl_add_u32 v5, v2, 4, v9")
    A("v_mul_u32_u24 v7, 3584, v5")
    A("v_lshlrev_b32 v6, 2, v9")
    A("v_xor_b32 v8, v6, v22")
    A("v_lshl_add_u32 v14, v8, 4, v7")
    for i in range(1, 4):
        A(f"v_add_u32 v{14+i}, {i*(14336-1024)}, v14")
    A("s_lshl_b32 s45, s43, 12")
    ORD = {"g4b": ["0123456", "2345601", "4560123", "6012345"],
           "m3": ["0124563", "0134562", "4560123", "4501263"],
           "m3b": ["0124563", "0314562", "4560123", "4510263"],
           "m4": ["0123456", "0234561", "4560123", "4601235"],
           "m5": ["0124563", "0134562", "4560123", "4562013"],
           "full": ["0123456"]*4,
           "g2": ["0123456", "4560123", "0123456", "4560123"]}[rot1]
    ot = [sum(int(ch) << (4*p) for p, ch in enumerate(o)) for o in ORD]
    for o in ORD: assert sorted(o) == list("0123456")
    A("s_add_u32 s46, s38, s39")
    A("s_bitcmp1_b32 s46, 0")
    A(f"s_mov_b32 s57, 0x{ot[0]:x}")
    A(f"s_cselect_b32 s57, 0x{ot[1]:x}, s57")
    A(f"s_mov_b32 s44, 0x{ot[2]:x}")
    A(f"s_cselect_b32 s44, 0x{ot[3]:x}, s44")
    A("s_bitcmp1_b32 s46, 1")
    A("s_cselect_b32 s57, s44, s57")
    if rot1 == "full":
        A("s_add_u32 s46, s46, s38")
        mod7("s46")
        A("s_mul_i32 s44, s46, 0x1111111")
        A("s_add_u32 s57, s57, s44")
        A("s_add_u32 s44, s57, 0x1111111")
        A("s_and_b32 s44, s44, 0x8888888")
        A("s_lshr_b32 s44, s44, 3")
        A("s_mul_i32 s44, s44, 7")
        A("s_sub_u32 s57, s57, s44")
    if xo == 5:
        A("s_lshr_b32 s44, s36, 1")
        A("s_add_u32 s44, s44, s36")
        A("s_bitcmp1_b32 s44, 0")
        A("s_cselect_b32 s44, 0x11, 0")
        A("s_xor_b32 s57, s57, s44")
    elif xo:
        A("s_lshr_b32 s44, s36, 1")
        if xo == 4:
            A("s_lshl_b32 s46, s36, 1")
            A("s_add_u32 s44, s44, s46")
            A("s_and_b32 s44, s44, 3")
            A(f"s_mul_i32 s44, s44, 0x1111111")
        else:
            A("s_add_u32 s44, s44, s36")
            A("s_and_b32 s44, s44, 1")
            A(f"s_mul_i32 s44, s44, 0x{0x1111111*xo:x}")
        A("s_add_u32 s57, s57, s44")
        A("s_add_u32 s44, s57, 0x1111111")
        A("s_and_b32 s44, s44, 0x8888888")
        A("s_lshr_b32 s44, s44, 3")
        A("s_mul_i32 s44, s44, 7")
        A("s_sub_u32 s57, s57, s44")
    A("s_mul_i32 s44, s40, 114688")
    A("s_lshl_b32 s49, s41, 8")
    A("s_mov_b32 s18, 114688")
    A("s_mov_b32 s19, 0x20000")
    A("s_sub_u32 s22, 1605632, s49")
    A("s_mov_b32 s23, 0x20000")
    A("s_waitcnt lgkmcnt(0)")
    A("s_add_u32 s16, s4, s44")
    A("s_addc_u32 s17, s5, 0")
    A("s_add_u32 s20, s6, s49")
    A("s_addc_u32 s21, s7, 0")
    if stamps: A("s_memrealtime s[90:91]")
    emit_item(0)
    w2_setup()
    if B:
        A(f"s_mul_i32 s44, s43, {448*896}")
        A("s_lshl_b32 s52, s37, 11")
        A("s_add_u32 s44, s44, s52")
        A("s_add_u32 s52, s8, s44")
        A("s_addc_u32 s53, s9, 0")
    emit_item(1)
    pf = [(p, k) for p in range(NP) for k in range(32)] if B else []
    def pf_batch(nb):
        for _ in range(nb):
            if not pf: return
            p, k = pf.pop(0)
            if k == 0:
                A(f"s_mul_i32 s44, s47, {64*896}")
                A("s_add_u32 s54, s52, s44")
                A("s_addc_u32 s55, s53, 0")
                A("s_add_u32 s47, s47, 1")
                A("s_cmp_eq_u32 s47, 7")
                A("s_cselect_b32 s47, 0, s47")
            A(f"s_load_dword s56, s[54:55], {k*64}")
    cnts = [int(x) for x in cnt.split(",")] if cnt else None
    allops = [(n, op) for n in aux_items[2:] for op in item_ops(n)]
    if cnts: assert sum(cnts) == len(allops)
    for t in range(7):
        g.wait_vm(("p1", t))
        A("s_barrier")
        if stamps: A(f"s_memrealtime s[{66+2*t}:{67+2*t}]")
        if t >= T0: pf_batch(B)
        if cnts:
            for _ in range(cnts[t]):
                n, op = allops.pop(0)
                if n >= 5: assert last_read[n - 5] < first_grp[t], (n, t)
                if n == 8 and w8: g.wait_vm(("w2", 0))
                emit_op(op)
            if t < 6: assert not any(n <= t + 1 for n, _ in allops)
        else:
          for n in sch[t]:
            if n >= 5:
                old = n - 5
                assert last_read[old] < first_grp[t], (n, t)
            emit_item(n)
    A("s_waitcnt vmcnt(0)")
    if stamps: A(f"s_memrealtime s[80:81]")
    A("s_barrier")
    pf_batch(len(pf))
    if stamps:
        A("s_waitcnt lgkmcnt(0)")
        for u in range(9, NST-1): A(f"s_memrealtime s[{64+2*u}:{65+2*u}]")
        A("s_barrier")
        A("s_branch L_dump")
    g.label("L_end")
    A("s_endpgm")
    g.vm = []
    if helpers:
        g.C("================= spare CUs: L2 prefetch of w2 =================")
        g.label("L_helper")
        A("s_sub_u32 s38, s37, 28")
        A(f"s_mul_i32 s38, s38, {448*896}")
        A(f"s_mul_i32 s39, s3, {56*128}")
        A("s_add_u32 s38, s38, s39")
        A("v_min_u32 v4, 55, v1")
        A("v_lshlrev_b32 v4, 7, v4")
        A(f"s_add_u32 s47, s36, {HO}")
        mod7("s47")
        A("s_mov_b32 s26, 1605632")
        A("s_mov_b32 s27, 0x20000")
        A("s_waitcnt lgkmcnt(0)")
        A("s_mov_b32 s24, s8")
        A("s_mov_b32 s25, s9")
        if hx:
            A("s_mov_b32 s16, s4")
            A("s_mov_b32 s17, s5")
            A("s_mov_b32 s18, 1835008")
            A("s_mov_b32 s19, 0x20000")
            A("v_and_b32 v7, 7, v1")
            A("v_mul_u32_u24 v7, 896, v7")
            A("v_lshrrev_b32 v8, 3, v1")
            A("v_min_u32 v8, 2, v8")
            if hx == 1:
                A("v_lshl_add_u32 v7, v8, 8, v7")
                A("s_bfe_u32 s50, s36, 0x10001")
                A("s_add_u32 s50, s50, 1")
                A("s_lshl_b32 s50, s50, 7")
            else:
                A("v_mul_u32_u24 v8, v8, v8")
                A("v_lshl_add_u32 v7, v8, 7, v7")
                A("s_movk_i32 s50, 256")
            A("s_lshl_b32 s49, s36, 2")
            A("s_add_u32 s49, s49, s37")
            A("s_sub_u32 s49, s49, 28")
            A("s_lshl_b32 s49, s49, 3")
            A("s_add_u32 s49, s49, s3")
            A(f"s_mul_i32 s49, s49, {8*896}")
            A("s_add_u32 s49, s49, s50")
            A("buffer_load_dword v6, v7, s[16:19], s49 offen")
        for u in range(HP):
            A(f"s_mul_i32 s49, s47, {64*896}")
            A("s_add_u32 s49, s49, s38")
            if u == 0:
                for k in range(ramp):
                    A(f"s_cmp_lg_u32 s3, {k}")
                    A(f"s_cbranch_scc1 L_hr{k}")
                    A("buffer_load_dword v6, v4, s[24:27], s49 offen")
                    A("s_waitcnt vmcnt(0)")
                    g.label(f"L_hr{k}")
                    A("s_barrier")
            A("buffer_load_dword v6, v4, s[24:27], s49 offen")
            if hser: A("s_waitcnt vmcnt(0)")
            A("s_add_u32 s47, s47, 1")
            A("s_cmp_eq_u32 s47, 7")
            A("s_cselect_b32 s47, 0, s47")
            if stamps: A(f"s_memrealtime s[{66+2*u}:{67+2*u}]")
        if hh:
            A("v_mov_b32 v36, 0")
            A("global_load_dword v32, v36, s[12:13] sc1")
            A("s_sub_u32 s38, s37, 28")
            A("s_mov_b32 s47, s36")
            mod7("s47")
            A(f"s_mov_b32 s48, 0x{tabs[0]:x}")
            for r in range(1, 4):
                A(f"s_cmp_eq_u32 s38, {r}")
                A(f"s_cselect_b32 s48, 0x{tabs[r]:x}, s48")
            A("s_mul_i32 s44, s47, 0x1111111")
            A("s_add_u32 s48, s48, s44")
            A("s_add_u32 s44, s48, 0x1111111")
            A("s_and_b32 s44, s44, 0x8888888")
            A("s_lshr_b32 s44, s44, 3")
            A("s_mul_i32 s44, s44, 7")
            A("s_sub_u32 s48, s48, s44")
            A("s_and_b32 s43, s3, 3")
            A("s_and_b32 s44, s3, 4")
            A("s_lshr_b32 s48, s48, s44")
            A("s_lshr_b32 s45, s3, 2")
            A("s_lshl_b32 s42, s36, 2")
            A("s_add_u32 s42, s42, s38")
            A("s_mul_i32 s56, s42, 112")
            A("s_mul_i32 s57, s43, 28")
            A("s_add_u32 s56, s56, s57")
            A("s_lshl_b32 s56, s56, 11")
            A("s_lshl_b32 s57, s42, 2")
            A("s_add_u32 s57, s57, s43")
            A("s_lshl_b32 s57, s57, 7")
            A(f"s_add_u32 s57, s57, {FLAG_OFF}")
            A("s_add_u32 s6, s14, s57")
            A("s_addc_u32 s7, s15, 0")
            A("s_mov_b32 s28, s14")
            A("s_mov_b32 s29, s15")
            A(f"s_mov_b32 s30, {FLAG_OFF}")
            A("s_mov_b32 s31, 0x20000")
            A("v_lshlrev_b32 v4, 7, v1")
            A("s_waitcnt vmcnt(0)")
            A("v_readfirstlane_b32 s60, v32")
            A("s_mov_b32 s46, 0")
            A("s_nop 2")
            A("s_cmp_eq_u32 s60, 0")
            A("s_cbranch_scc1 L_hh_done")
            g.label("L_hh_next")
            A("s_and_b32 s49, s48, 7")
            A("s_lshl_b32 s50, s49, 2")
            g.label("L_hh_poll")
            A("s_load_dword s51, s[6:7], s50 glc")
            A("s_add_u32 s46, s46, 1")
            A("s_cmp_ge_u32 s46, 64")
            A("s_waitcnt lgkmcnt(0)")
            A("s_cbranch_scc1 L_hh_done")
            A("s_cmp_lg_u32 s51, s60")
            A("s_cbranch_scc1 L_hh_poll")
            A("s_lshl_b32 s49, s49, 13")
            A("s_add_u32 s49, s49, s56")
            A("buffer_load_dword v6, v4, s[28:31], s49 offen sc1")
            A("s_lshr_b32 s48, s48, 8")
            A("s_add_u32 s45, s45, 2")
            A(f"s_cmp_lt_u32 s45, {hh}")
            A("s_cbranch_scc1 L_hh_next")
            g.label("L_hh_done")
        if stamps:
            A("s_waitcnt vmcnt(0)")
            for u in range(HP, NST-1): A(f"s_memrealtime s[{66+2*u}:{67+2*u}]")
            A("s_branch L_dump")
        A("s_endpgm")

    g.C("================= waves 0..3: compute =================")
    g.label("L_compute")
    A("s_memrealtime s[60:61]")
    if prio: A(f"s_setprio {prio}")
    A("s_waitcnt lgkmcnt(0)")
    stamp("karg")
    A("v_mov_b32 v36, 0")
    A("s_or_b32 s44, s2, s43")
    A("s_cmp_lg_u32 s44, 0")
    A("s_cbranch_scc1 L_noepoch")
    A("s_or_b32 s60, s60, 1")
    A("s_atomic_swap s60, s[12:13], 0")
    g.label("L_noepoch")
    w2_setup()
    A("s_lshl_b32 s42, s36, 2")
    A("s_add_u32 s42, s42, s38")
    A("s_mov_b32 s28, s14")
    A("s_mov_b32 s29, s15")
    A(f"s_mov_b32 s30, {FLAG_OFF}")
    A("s_mov_b32 s31, 0x20000")
    A("s_mov_b32 s32, s10")
    A("s_mov_b32 s33, s11")
    A("s_mov_b32 s34, 1835008")
    A("s_mov_b32 s35, 0x20000")
    A("v_and_b32 v2, 31, v1")
    A("v_lshrrev_b32 v3, 5, v1")
    A("v_bfe_u32 v4, v1, 1, 3")
    A("v_xor_b32 v4, v4, v3")
    A("v_lshlrev_b32 v4, 4, v4")
    A("v_lshl_add_u32 v4, v2, 7, v4")
    A("s_lshr_b32 s52, s43, 1")
    A("s_and_b32 s53, s43, 1")
    A("s_lshl_b32 s44, s52, 13")
    A("v_add_u32 v22, s44, v4")
    for s in range(1, 4):
        A(f"v_xor_b32 v{22+s}, {s<<5}, v22")
    A("v_bfe_u32 v5, v1, 2, 2")
    A("v_lshl_add_u32 v6, v3, 3, v5")
    A("v_lshlrev_b32 v6, 8, v6")
    A("v_and_b32 v7, 3, v1")
    A("v_lshlrev_b32 v7, 3, v7")
    A("v_bfe_u32 v8, v1, 4, 1")
    A("v_lshl_add_u32 v7, v8, 5, v7")
    A("s_lshl_b32 s44, s53, 1")
    A("v_xor_b32 v9, s44, v5")
    A("v_lshl_add_u32 v9, v9, 6, v7")
    A("v_add_u32 v26, v9, v6")
    A("v_add_u32 v26, 16384, v26")
    A("v_xor_b32 v27, 64, v26")
    A("v_lshl_add_u32 v6, v3, 2, v5")
    A("v_lshlrev_b32 v6, 7, v6")
    A("v_lshrrev_b32 v9, 1, v5")
    A("v_xor_b32 v9, s52, v9")
    A("v_lshl_add_u32 v9, v9, 6, v7")
    A("v_add3_u32 v28, v9, v6, s51")
    A("v_xor_b32 v29, 64, v28")
    A("v_add_u32 v40, 0x10000, v28")
    A("v_add_u32 v41, 0x10000, v29")
    A("v_add_u32 v42, 0x20000, v28")
    A("v_add_u32 v43, 0x20000, v29")
    A("v_lshlrev_b32 v30, 4, v1")
    A("s_lshl_b32 s44, s53, 10")
    A("v_add_u32 v44, s44, v30")
    A("v_xor_b32 v45, 0x400, v44")
    A("s_lshl_b32 s44, s40, 1")
    A("s_add_u32 s44, s44, s52")
    A("s_mul_i32 s54, s44, 112")
    A("s_lshl_b32 s55, s41, 1")
    A("s_add_u32 s55, s55, s53")
    A("s_lshl_b32 s56, s55, 2")
    A("s_add_u32 s54, s54, s56")
    A("s_lshl_b32 s54, s54, 11")
    A("s_add_u32 s98, s54, 4096")
    A("s_mul_i32 s56, s55, 37")
    A("s_lshr_b32 s56, s56, 8")
    A("s_mul_i32 s57, s56, 7")
    A("s_sub_u32 s57, s55, s57")
    A("s_lshl_b32 s44, s44, 2")
    A("s_add_u32 s44, s44, s56")
    A("s_lshl_b32 s44, s44, 7")
    A("s_lshl_b32 s57, s57, 2")
    A("s_add_u32 s55, s44, s57")
    A(f"s_add_u32 s55, s55, {FLAG_OFF}")
    A("s_add_u32 s4, s14, s55")
    A("s_addc_u32 s5, s15, 0")
    A("s_mul_i32 s56, s42, 112")
    A("s_mul_i32 s57, s43, 28")
    A("s_add_u32 s56, s56, s57")
    A("s_lshl_b32 s56, s56, 11")
    A("s_lshl_b32 s57, s42, 2")
    A("s_add_u32 s57, s57, s43")
    A("s_lshl_b32 s57, s57, 7")
    A(f"s_add_u32 s57, s57, {FLAG_OFF}")
    A("s_add_u32 s6, s14, s57")
    A("s_addc_u32 s7, s15, 0")
    A("s_lshl_b32 s44, s42, 6")
    A("s_lshl_b32 s58, s53, 5")
    A("s_add_u32 s44, s44, s58")
    A("s_mul_i32 s44, s44, 896")
    A("s_lshl_b32 s58, s39, 7")
    A("s_add_u32 s44, s44, s58")
    A("s_lshl_b32 s58, s52, 6")
    A("s_add_u32 s99, s44, s58")
    A("v_mul_u32_u24 v38, 896, v2")
    A("v_lshl_add_u32 v38, v3, 4, v38")
    A("v_add_u32 v10, s51, v30")
    A("v_add_u32 v11, 0x10000, v10")
    A("v_xor_b32 v12, 0x2000, v10")
    A("v_xor_b32 v13, 0x4000, v11")
    A("v_xor_b32 v14, 0x6000, v11")
    A("s_waitcnt lgkmcnt(0)")

    ACC = 48
    def acc(i, j):
        b = ACC + (i*2+j)*16
        return f"v[{b}:{b+15}]"
    FB = 112; PK = 160; SB = 192
    basex = [0]*4; basew = [0]*2
    def rebase(reg, cur, want):
        if cur != want:
            A(f"v_add_u32 v{reg}, 0x{(want - cur) & 0xffffffff:x}, v{reg}")
        return want
    synced = set()
    def chunk_sync(t):
        if g.lg:
            A("s_waitcnt lgkmcnt(0)"); g.lg = []
        A("s_barrier")
        synced.add(t)
        if t in (0, 3, 6): stamp(f"c{t}")
    def plan(n):
        t, s_, i = groups[n]
        slot = t % 5
        want = (slot // 2) * 65536
        so = slot*32768 - want
        b0 = FB + (n % 2)*24
        rd = []
        def W(ss, ii, reg):
            basew[ii] = rebase(26+ii, basew[ii], want)
            for jj in range(2):
                rd.append((("f", n, reg), f"ds_read_b64_tr_b16 v[{reg+2*jj}:{reg+2*jj+1}], v{26+ii} offset:{so + ss*4096 + jj*1024}"))
        def X(ss, jj, reg):
            basex[ss] = rebase(22+ss, basex[ss], want)
            rd.append((("f", n, reg), f"ds_read_b128 v[{reg}:{reg+3}], v{22+ss} offset:{so + jj*4096}"))
        if i is None:
            W(s_, 0, b0); X(s_, 0, b0+4); X(s_, 1, b0+8); W(s_, 1, b0+12)
            mf = [(0, 0, b0, b0+4, b0+4), (0, 1, b0, b0+8, b0+8), (1, 1, b0+12, b0+8, b0+12), (1, 0, b0+12, b0+4, b0+12)]
        else:
            W(s_, i, b0); X(s_, 0, b0+4); X(s_, 1, b0+8); W(s_+1, i, b0+12); X(s_+1, 0, b0+16); X(s_+1, 1, b0+20)
            mf = [(i, 0, b0, b0+4, b0+4), (i, 1, b0, b0+8, b0+8), (i, 0, b0+12, b0+16, b0+16), (i, 1, b0+12, b0+20, b0+20)]
        return rd, mf
    def epi_ops(i):
        out = []
        for j in range(2):
            for half in range(2):
                src = ACC + (i*2+j)*16 + half*8
                dst = PK + ((i*2+j)*2+half)*4
                for e in range(4):
                    out.append(("v", f"v_cvt_pk_bf16_f32 v{dst+e}, v{src+2*e}, v{src+2*e+1}"))
                for e in range(4):
                    out.append(("v", f"v_pk_max_i16 v{dst+e}, v{dst+e}, 0"))
                off = (2*i+half)*2048 + j*1024
                sreg = "s54" if off < 4096 else "s98"
                o = off % 4096
                out.append(("m", f"buffer_store_dwordx4 v[{dst}:{dst+3}], v30, s[28:31], {sreg} offen" + (f" offset:{o}" if o else "") + " sc1"))
        return out
    def emit_epi(op):
        if op[0] == "v": A(op[1])
        else: g.vmem("hst", op[1])
    g.C("---- phase 1: h tile ----")
    last_i0 = max(n for n, (t, s_, i) in enumerate(groups) if i in (None, 0))
    epi0 = []
    started = set()
    chunk_sync(0)
    rd, mf = plan(0)
    for tag, ins in rd: g.ds(tag, ins)
    for n in range(NGR):
        rdn = []; mfn = None
        if n + 1 < NGR:
            tn = groups[n+1][0]
            if tn not in synced: chunk_sync(tn)
            rdn, mfn = plan(n + 1)
        if n == 8:
            g.vmem("epoch", "global_load_dword v32, v36, s[12:13] sc1")
        if n == last_i0 + 2 and last_i0 < NGR - 1:
            epi0 = epi_ops(0)
        for k, (i, j, a_, b_, wt) in enumerate(mf):
            g.wait_lg(("f", n, wt))
            if k == 0:
                for _ in range(3):
                    if rdn: tag, ins = rdn.pop(0); g.ds(tag, ins)
            c = acc(i, j) if (i, j) in started else "0"
            started.add((i, j))
            A(f"v_mfma_f32_32x32x16_bf16 {acc(i,j)}, v[{a_}:{a_+3}], v[{b_}:{b_+3}], {c}")
            if k <= 1:
                for _ in range(3):
                    if rdn: tag, ins = rdn.pop(0); g.ds(tag, ins)
            for _ in range(5 if k >= 1 else 2):
                if epi0: emit_epi(epi0.pop(0))
        assert not rdn
        mf = mfn
    stamp("p1end")
    npad = len(epi0)
    while epi0: emit_epi(epi0.pop(0))
    if last_i0 == NGR - 1:
        A("s_nop 8")
        for op in epi_ops(0): emit_epi(op)
    elif last_i0 + 2 >= NGR:
        A("s_nop 7")
        for op in epi_ops(0): emit_epi(op)
    else:
        A(f"s_nop {max(0, 10 - npad)}")
    for op in epi_ops(1): emit_epi(op)
    stamp("hst_iss")
    g.C("---- hand-off: rest of w2 -> LDS / registers, publish flag, poll flags ----")
    A("s_barrier")
    next_item = 7 + npre
    emit_item(next_item); next_item += 1
    def w2addr(u, i):
        slot = SLOT2[u]
        return [28, 40, 42][slot // 2] + i, (slot % 2)*32768
    stashed = set()
    def stash(u):
        if u in stashed: return
        stashed.add(u)
        g.wait_vm(("w2", u))
        for s in range(4):
            for i in range(2):
                reg, so = w2addr(u, i)
                for jj in range(2):
                    a = SB + (u*4+s)*8 + i*4 + jj*2
                    g.ds(("stash", u), f"ds_read_b64_tr_b16 v[{a}:{a+1}], v{reg} offset:{so + s*2048 + jj*1024}")
    for u in range(min(npre, 2)): stash(u)
    g.wait_vm("epoch")
    A("v_cmp_ne_u32 vcc, 0, v32")
    A("s_cbranch_vccnz L_epoch_ok")
    A("s_mov_b32 s44, 0")
    g.label("L_epoch_spin")
    A("global_load_dword v32, v36, s[12:13] sc1")
    A("s_waitcnt vmcnt(0)")
    A("s_add_u32 s44, s44, 1")
    A("s_cmp_ge_u32 s44, 0x40000")
    A("s_cbranch_scc1 L_epoch_ok")
    A("v_cmp_eq_u32 vcc, 0, v32")
    A("s_cbranch_vccnz L_epoch_spin")
    g.label("L_epoch_ok")
    A("v_readfirstlane_b32 s60, v32")
    A("v_readfirstlane_b32 s61, v32")
    A("s_nop 4")
    g.wait_vm("hst")
    stamp("hst_done")
    A("s_atomic_swap s60, s[4:5], 0")
    while next_item <= 13:
        if next_item == 10: stash(0)
        if next_item == 11: stash(1)
        if next_item >= 12: g.wait_lg(("stash", next_item - 12))
        if next_item == 13:
            A("s_load_dwordx8 s[16:23], s[6:7], 0 glc")
        emit_item(next_item); next_item += 1
    stamp("w2iss")
    A("s_mov_b32 s44, 0")
    A("s_branch L_poll_chk")
    g.label("L_poll")
    A("s_load_dwordx8 s[16:23], s[6:7], 0 glc")
    A("s_add_u32 s44, s44, 1")
    A("s_cmp_ge_u32 s44, 0x80000")
    A("s_cbranch_scc1 L_flags_to")
    g.label("L_poll_chk")
    A("s_waitcnt lgkmcnt(0)")
    g.lg = []
    A("s_cmp_lg_u64 s[16:17], s[60:61]")
    A("s_cbranch_scc1 L_poll")
    A("s_cmp_lg_u64 s[18:19], s[60:61]")
    A("s_cbranch_scc1 L_poll")
    A("s_cmp_lg_u64 s[20:21], s[60:61]")
    A("s_cbranch_scc1 L_poll")
    A("s_cmp_lg_u32 s22, s60")
    A("s_cbranch_scc1 L_poll")
    g.label("L_flags_to")
    A("s_waitcnt lgkmcnt(0)")
    stamp("flags")
    g.C("---- phase 2: out tile ----")
    HB = 112; HN = 6
    WB = 160; WN = 4
    assert HD < HN
    def hload(step):
        u, s = divmod(step, 4)
        if s == 0:
            A(f"s_bfe_u32 s58, s48, 0x{(3<<16)|(4*u):x}")
            A("s_lshl_b32 s58, s58, 13")
            A("s_add_u32 s58, s58, s56")
            A("s_add_u32 s59, s58, 4096")
        res = []
        for j in range(2):
            b = HB + (step % HN)*8 + j*4
            off = s*2048
            sreg = "s58" if off < 4096 else "s59"
            o = off % 4096
            res.append((("h", step, j), f"buffer_load_dwordx4 v[{b}:{b+3}], v{44+j}, s[28:31], {sreg} offen" + (f" offset:{o}" if o else "") + " sc1"))
        return res
    def w2reads(step):
        u, s = divmod(step, 4)
        if u < 2: return
        if s == 0: g.wait_vm(("w2", u))
        for i in range(2):
            reg, so = w2addr(u, i)
            for jj in range(2):
                b = WB + (step % WN)*8 + i*4 + jj*2
                g.ds(("wf", step), f"ds_read_b64_tr_b16 v[{b}:{b+1}], v{reg} offset:{so + s*2048 + jj*1024}")
    for st in range(HD):
        for tag, ins in hload(st): g.vmem(tag, ins)
    WD = 2
    def mf2(st, i, j):
        c = "0" if st == 0 else acc(i, j)
        hb = HB + (st % HN)*8 + j*4
        b = (SB + st*8 if st < 8 else WB + (st % WN)*8) + i*4
        A(f"v_mfma_f32_32x32x16_bf16 {acc(i,j)}, v[{b}:{b+3}], v[{hb}:{hb+3}], {c}")
    def redw(q, p):
        b = ACC + q*16 + p*4
        A(f"ds_write_b128 v{10 + q//2}, v[{b}:{b+3}] offset:{(q%2)*32768 + p*1024}")
    for st in range(26):
        w2reads(st + WD)
        g.wait_vm(("h", st, 0))
        if st == 0: stamp("h0")
        g.wait_lg(("wf", st))
        lds = hload(st + HD) if st + HD < 28 else []
        for k, (i, j) in enumerate([(0, 0), (1, 0), (1, 1), (0, 1)]):
            if j == 1: g.wait_vm(("h", st, 1))
            mf2(st, i, j)
            if k % 2 == 0 and lds:
                tag, ins = lds.pop(0)
                g.vmem(tag, ins)
    g.wait_lg(("wf", 27))
    g.wait_vm(("h", 26, 0)); mf2(26, 1, 0)
    g.wait_vm(("h", 26, 1)); mf2(26, 1, 1); mf2(26, 0, 1)
    g.wait_vm(("h", 27, 0)); mf2(27, 1, 0)
    g.wait_vm(("h", 27, 1)); mf2(27, 1, 1); mf2(27, 0, 1)
    mf2(26, 0, 0)
    stamp("p2end")
    A("s_nop 8")
    for p in range(4): redw(2, p)
    mf2(27, 0, 0)
    for p in range(4): redw(3, p)
    for p in range(4): redw(1, p)
    A("s_waitcnt lgkmcnt(0)")
    A("s_barrier")
    g.lg = []
    RB = 192
    for p in range(4):
        for q in range(1, 4):
            b = RB + (q-1)*16 + p*4
            g.ds(("red", p), f"ds_read_b128 v[{b}:{b+3}], v{11+q} offset:{(q%2)*32768 + p*1024}")
    for p in range(4):
        g.wait_lg(("red", p))
        for r in range(4*p, 4*p+4):
            A(f"v_add_f32 v{RB+r}, v{RB+r}, v{RB+16+r}")
            A(f"v_add_f32 v{ACC+r}, v{ACC+r}, v{RB+32+r}")
        for r in range(4*p, 4*p+4):
            A(f"v_add_f32 v{ACC+r}, v{ACC+r}, v{RB+r}")
        A(f"v_cvt_pk_bf16_f32 v{240+2*p}, v{ACC+4*p}, v{ACC+4*p+1}")
        A(f"v_cvt_pk_bf16_f32 v{241+2*p}, v{ACC+4*p+2}, v{ACC+4*p+3}")
        if p % 2 == 1:
            b = 240 + 2*(p-1)
            A("s_nop 1")
            A(f"v_permlane32_swap_b32 v{b}, v{b+2}")
            A(f"v_permlane32_swap_b32 v{b+1}, v{b+3}")
            A(f"buffer_store_dwordx4 v[{b}:{b+3}], v38, s[32:35], s99 offen" + (" offset:32" if p == 3 else ""))
    if probe is not None:
        stamp("st_iss")
        A("s_waitcnt vmcnt(0)")
        stamp("st_done")
        A("s_waitcnt lgkmcnt(0)")
        A("s_add_u32 s96, s96, 2000")
        g.label("L_dly")
        A("s_memrealtime s[100:101]")
        A("s_waitcnt lgkmcnt(0)")
        A("s_sub_u32 s100, s100, s96")
        A("s_cmp_lt_i32 s100, 0")
        A("s_cbranch_scc1 L_dly")
    if stamps:
        stamp("st_iss")
        A("s_waitcnt vmcnt(0)")
        stamp("st_done")
        g.label("L_dump")
        A("s_memrealtime s[94:95]")
        A("s_waitcnt lgkmcnt(0)")
        A("s_lshl_b32 s44, s2, 3")
        A("s_add_u32 s44, s44, s3")
        A("s_lshl_b32 s44, s44, 8")
        A(f"s_add_u32 s44, s44, 0x{STAMP_OFF:x}")
        A("v_mov_b32 v2, s44")
        A("s_mov_b64 exec, 1")
        regs = [62] + [64+2*i for i in range(NST)] + [94]
        for i, r in enumerate(regs):
            A(f"v_mov_b32 v4, s{r}")
            A(f"v_mov_b32 v5, s{r+1}")
            A(f"global_store_dwordx2 v2, v[4:5], s[14:15] offset:{8*i}")
            A("s_waitcnt vmcnt(0)")
    A("s_endpgm")
    g.label("L_code_end")
    DOC = """;
"""
    hdr = HEADER_COMMENTS + f"; @launch grid=({GRID},1,1) block=(512,1,1) lds=163840\n" + DOC
    hdr += f'''.amdgcn_target "amdgcn-amd-amdhsa--gfx950"
.text
.globl {KNAME}
.p2align 8
.type {KNAME},@function
{KNAME}:
'''
    ftr = f'''
.section .rodata,"a"
.p2align 6
.amdhsa_kernel {KNAME}
  .amdhsa_next_free_vgpr 256
  .amdhsa_next_free_sgpr 102
  .amdhsa_accum_offset 256
  .amdhsa_group_segment_fixed_size 0
  .amdhsa_kernarg_size 48
  .amdhsa_user_sgpr_count 2
  .amdhsa_user_sgpr_kernarg_segment_ptr 1
  .amdhsa_system_sgpr_workgroup_id_x 1
.end_amdhsa_kernel
'''
    return hdr + "\n".join(g.L) + ftr, names

if __name__ == "__main__":
    ap = argparse.ArgumentParser()
    ap.add_argument("-o", default="k7.s")
    ap.add_argument("--stamps", action="store_true")
    ap.add_argument("--probe", type=int, default=None)
    ap.add_argument("--rot1", default="m3")
    ap.add_argument("--order1", default="0,1,2,3,4a,5a,6a,4b,5b,6b")
    ap.add_argument("--sched", default="2,3,45,67,,,")
    for k, d in (("HD", 5), ("NP", 0), ("B", 0), ("T0", 1), ("prio", 1), ("aprio", 0), ("helpers", 0), ("ramp", 1), ("HP", 7), ("xo", 1), ("HO", 0), ("hser", 0), ("tabm", 1), ("hh", 0), ("w8", 0), ("hx", 0), ("sw1", 0), ("cph", 0)):
        ap.add_argument("--" + k, type=int, default=d)
    ap.add_argument("--cnt", default="")
    a = ap.parse_args()
    kw = vars(a).copy(); o = kw.pop("o")
    s, n = gen(**kw)
    open(o, "w").write(s)
    print("written", o, "names", ",".join(n), "lines", s.count("\n"))
```

```python
import sys, argparse
sys.path.insert(0, "gen")
from k1 import G, KNAME, HEADER_COMMENTS

def gen(stamps=False, probe=None, rot1="g4b", HD=5, order1="0,1,2,3,4a,5a,6a,4b,5b,6b",
        sched="2,3,45,6,7,8,", NP=3, B=16, T0=1, prio=1, aprio=0, helpers=0, ramp=1, HP=7, xo=0, HO=0, hser=0, tabm=1, hh=0, w8=0, hx=0, sw1=0, cph=0, PFT=-1, PFN=3, PFP=1, PP=13, HF=0, cnt=""):
    g = G(); A = g.A
    NWG = 224
    GRID = 256 if helpers else 224
    FLAG_OFF = 0x800000
    STAMP_OFF = 0x8000000
    NST = 14
    g.np = 0
    names = []
    def stamp(name):
        names.append(name)
        if probe is not None:
            if g.np == probe:
                A("s_memrealtime s[96:97]")
            g.np += 1
        if stamps:
            A(f"s_memrealtime s[{64+2*g.nst}:{65+2*g.nst}]")
            g.nst += 1
            assert g.nst <= NST
    def mod7(reg, tmp="s44"):
        A(f"s_cmp_ge_u32 {reg}, 7")
        A(f"s_cselect_b32 {tmp}, 7, 0")
        A(f"s_sub_u32 {reg}, {reg}, {tmp}")
    SLOT2 = [2, 3, 4, 0, 1, 2, 3]
    sch = [[int(ch) for ch in tok] for tok in sched.split(",")]
    assert len(sch) == 7
    aux_items = [0, 1] + [n for tok in sch for n in tok]
    assert aux_items == list(range(len(aux_items))) and len(aux_items) >= 7
    npre = len(aux_items) - 7
    def otab(r):
        pf = list(range(NP))
        rest = list(range(NP, 7))
        seq = []
        if NP == 0 and tabm == 2:
            return [r, 4, (r+1) % 4, (r+2) % 4, 5, (r+3) % 4, 6]
        if NP == 0 and tabm == 9:
            return [3, 4, 5, 6, 0, 1, 2]
        if NP == 0 and tabm == 10:
            return [4, 5, 6, 0, 1, 2, 3]
        if NP == 0 and tabm == 4:
            return [r % 3, 3, (r+1) % 3, 4, (r+2) % 3, 5, 6]
        if NP == 0 and tabm == 5:
            return [r % 2, 2, (r+1) % 2, 3, 4, 5, 6]
        if NP == 0 and tabm == 3:
            return [4, r, 5, (r+1) % 4, (r+2) % 4, (r+3) % 4, 6]
        if NP == 0:
            l2 = 4 + r % 3
            return [r, l2] + [(r + k) % 4 for k in (1, 2, 3)] + [4 + (l2 - 4 + k) % 3 for k in (1, 2)]
        rr = [rest[(r + k) % len(rest)] for k in range(len(rest))] if rest else []
        seq = pf[:npre] + rr[:1] + pf[npre:] + rr[1:]
        assert sorted(seq) == list(range(7))
        return seq
    tabs = [sum(o << (4*p) for p, o in enumerate(otab(r))) for r in range(4)]

    if stamps:
        A("s_memrealtime s[62:63]")
    stamp("start")
    A(f"s_cmp_ge_u32 s2, {GRID}")
    A("s_cbranch_scc1 L_end")
    A("s_load_dwordx8 s[4:11], s[0:1], 0")
    A("s_load_dwordx4 s[12:15], s[0:1], 32")
    A("s_getpc_b64 s[58:59]")
    g.label("L_pc")
    A("v_lshlrev_b32 v5, 7, v0")
    A("v_min_u32 v5, L_code_end-L_pc-4, v5")
    A("v_lshrrev_b32 v2, 6, v0")
    if cph:
        A(f"s_cmp_lt_u32 s2, {NWG}")
        A("s_cbranch_scc1 L_nocp")
    A("global_load_dword v47, v5, s[58:59]")
    if cph: g.label("L_nocp")
    A("v_and_b32 v1, 63, v0")
    A("s_and_b32 s36, s2, 7")
    A("v_readfirstlane_b32 s3, v2")
    A("s_lshr_b32 s37, s2, 3")
    if helpers:
        A(f"s_cmp_ge_u32 s2, {NWG}")
        A("s_cbranch_scc1 L_helper")
    A("s_mul_i32 s38, s37, 37")
    A("s_lshr_b32 s38, s38, 8")
    A("s_mul_i32 s39, s38, 7")
    A("s_sub_u32 s39, s37, s39")
    A("s_lshr_b32 s40, s36, 1")
    A("s_lshl_b32 s40, s40, 2")
    A("s_add_u32 s40, s40, s38")
    A("s_and_b32 s41, s36, 1")
    A("s_mul_i32 s41, s41, 7")
    A("s_add_u32 s41, s41, s39")
    A("v_and_b32 v2, 3, v2")
    A("v_lshrrev_b32 v3, 3, v1")
    A("v_and_b32 v4, 7, v1")
    A("s_and_b32 s43, s3, 3")
    A("s_cmp_lt_u32 s3, 4")
    A("s_cbranch_scc1 L_compute")

    def item_ops(n):
        ops = []
        if n < 7:
            slot = n % 5
            tag = ("p1", n)
            pre = [f"s_bfe_u32 s46, s57, 0x{(3<<16)|(4*n):x}", "s_lshl_b32 s49, s46, 7", f"s_add_u32 m0, s45, {slot*32768}", f"s_mul_i32 s50, s46, {64*3584}"]
            for i in range(4):
                off = f" offset:{1024*i}" if i else ""
                ops.append((pre if i == 0 else [], tag, f"buffer_load_dwordx4 v{10+i}, s[16:19], s49 offen{off} lds"))
            for i in range(4):
                off = f" offset:{1024*i}" if i else ""
                pre = [f"s_add_u32 m0, s45, {slot*32768+16384}", "s_nop 0"]
                ops.append((pre if i == 0 else [], tag, f"buffer_load_dwordx4 v{14+i}, s[20:23], s50 offen{off} lds"))
            if (sw1 >> n) & 1:
                p0 = ops[0][0]; p4 = ops[4][0]
                first = [([p0[0], p0[1], p4[0], p0[3]], tag, ops[4][2])] + ops[5:8]
                second = [([p0[2], "s_nop 0"], tag, ops[0][2])] + ops[1:4]
                ops = first + second
        else:
            u = n - 7
            slot = SLOT2[u]
            tag = ("w2", u)
            pre = [f"s_bfe_u32 s49, s48, 0x{(3<<16)|(4*u):x}", f"s_mul_i32 s49, s49, {64*896}", f"s_add_u32 m0, s51, {slot*32768}", f"s_add_u32 s50, s49, {32*896}"]
            for i in range(4):
                off = f" offset:{1024*i}" if i else ""
                ops.append((pre if i == 0 else [], tag, f"buffer_load_dwordx4 v{18+i}, s[24:27], s49 offen{off} lds"))
            for i in range(4):
                off = f" offset:{1024*i}" if i else ""
                pre = [f"s_add_u32 m0, s51, {slot*32768+4096}", "s_nop 0"]
                ops.append((pre if i == 0 else [], tag, f"buffer_load_dwordx4 v{18+i}, s[24:27], s50 offen{off} lds"))
        return ops
    def emit_op(op):
        pre, tag, ins = op
        for p in pre: A(p)
        g.vmem(tag, ins)
    def emit_item(n):
        for op in item_ops(n): emit_op(op)
    def w2_setup():
        A("v_mul_u32_u24 v5, 448, v2")
        A("v_add_u32 v5, v5, v3")
        A("v_mul_u32_u24 v7, 896, v5")
        A("v_bfe_u32 v6, v1, 4, 1")
        A("v_lshlrev_b32 v6, 2, v6")
        A("v_xor_b32 v8, v6, v4")
        A("v_lshl_add_u32 v18, v8, 4, v7")
        for i in range(1, 4):
            A(f"v_add_u32 v{18+i}, {i*(7168-1024)}, v18")
        A("s_lshl_b32 s44, s39, 7")
        A("s_add_u32 s24, s8, s44")
        A("s_addc_u32 s25, s9, 0")
        A("s_sub_u32 s26, 1605632, s44")
        A("s_mov_b32 s27, 0x20000")
        A("s_lshl_b32 s51, s43, 13")
        A("s_mov_b32 s47, s36")
        mod7("s47")
        A(f"s_mov_b32 s48, 0x{tabs[0]:x}")
        for r in range(1, 4):
            A(f"s_cmp_eq_u32 s38, {r}")
            A(f"s_cselect_b32 s48, 0x{tabs[r]:x}, s48")
        A("s_mul_i32 s44, s47, 0x1111111")
        A("s_add_u32 s48, s48, s44")
        A("s_add_u32 s44, s48, 0x1111111")
        A("s_and_b32 s44, s44, 0x8888888")
        A("s_lshr_b32 s44, s44, 3")
        A("s_mul_i32 s44, s44, 7")
        A("s_sub_u32 s48, s48, s44")

    groups = []
    for tok in order1.split(","):
        t = int(tok[0])
        if len(tok) == 1:
            for s_ in range(4): groups.append((t, s_, None))
        else:
            for s_ in (0, 2): groups.append((t, s_, "ab".index(tok[1])))
    NGR = len(groups); assert NGR == 28
    first_grp = {t: min(n for n, gr in enumerate(groups) if gr[0] == t) for t in range(7)}
    last_read = {t: max(n for n, gr in enumerate(groups) if gr[0] == t) for t in range(7)}

    g.C("================= waves 4..7: LDS-DMA streaming =================")
    if aprio: A(f"s_setprio {aprio}")
    A("v_lshl_add_u32 v5, v2, 5, v3")
    A("v_mul_u32_u24 v7, 896, v5")
    A("v_lshrrev_b32 v6, 1, v3")
    A("v_xor_b32 v8, v6, v4")
    A("v_lshl_add_u32 v10, v8, 4, v7")
    A("v_xor_b32 v8, 4, v8")
    A("v_lshl_add_u32 v11, v8, 4, v7")
    A(f"v_add_u32 v11, {7168-1024}, v11")
    A(f"v_add_u32 v12, {2*(7168-1024)}, v10")
    A(f"v_add_u32 v13, {2*(7168-1024)}, v11")
    A("v_lshrrev_b32 v9, 4, v1")
    A("v_and_b32 v22, 15, v1")
    A("v_lshl_add_u32 v5, v2, 4, v9")
    A("v_mul_u32_u24 v7, 3584, v5")
    A("v_lshlrev_b32 v6, 2, v9")
    A("v_xor_b32 v8, v6, v22")
    A("v_lshl_add_u32 v14, v8, 4, v7")
    for i in range(1, 4):
        A(f"v_add_u32 v{14+i}, {i*(14336-1024)}, v14")
    A("s_lshl_b32 s45, s43, 12")
    ORD = {"g4b": ["0123456", "2345601", "4560123", "6012345"],
           "m3": ["0124563", "0134562", "4560123", "4501263"],
           "m3b": ["0124563", "0314562", "4560123", "4510263"],
           "m4": ["0123456", "0234561", "4560123", "4601235"],
           "m5": ["0124563", "0134562", "4560123", "4562013"],
           "full": ["0123456"]*4,
           "g2": ["0123456", "4560123", "0123456", "4560123"]}[rot1]
    ot = [sum(int(ch) << (4*p) for p, ch in enumerate(o)) for o in ORD]
    for o in ORD: assert sorted(o) == list("0123456")
    A("s_add_u32 s46, s38, s39")
    A("s_bitcmp1_b32 s46, 0")
    A(f"s_mov_b32 s57, 0x{ot[0]:x}")
    A(f"s_cselect_b32 s57, 0x{ot[1]:x}, s57")
    A(f"s_mov_b32 s44, 0x{ot[2]:x}")
    A(f"s_cselect_b32 s44, 0x{ot[3]:x}, s44")
    A("s_bitcmp1_b32 s46, 1")
    A("s_cselect_b32 s57, s44, s57")
    if rot1 == "full":
        A("s_add_u32 s46, s46, s38")
        mod7("s46")
        A("s_mul_i32 s44, s46, 0x1111111")
        A("s_add_u32 s57, s57, s44")
        A("s_add_u32 s44, s57, 0x1111111")
        A("s_and_b32 s44, s44, 0x8888888")
        A("s_lshr_b32 s44, s44, 3")
        A("s_mul_i32 s44, s44, 7")
        A("s_sub_u32 s57, s57, s44")
    if xo == 5:
        A("s_lshr_b32 s44, s36, 1")
        A("s_add_u32 s44, s44, s36")
        A("s_bitcmp1_b32 s44, 0")
        A("s_cselect_b32 s44, 0x11, 0")
        A("s_xor_b32 s57, s57, s44")
    elif xo:
        A("s_lshr_b32 s44, s36, 1")
        if xo == 4:
            A("s_lshl_b32 s46, s36, 1")
            A("s_add_u32 s44, s44, s46")
            A("s_and_b32 s44, s44, 3")
            A(f"s_mul_i32 s44, s44, 0x1111111")
        else:
            A("s_add_u32 s44, s44, s36")
            A("s_and_b32 s44, s44, 1")
            A(f"s_mul_i32 s44, s44, 0x{0x1111111*xo:x}")
        A("s_add_u32 s57, s57, s44")
        A("s_add_u32 s44, s57, 0x1111111")
        A("s_and_b32 s44, s44, 0x8888888")
        A("s_lshr_b32 s44, s44, 3")
        A("s_mul_i32 s44, s44, 7")
        A("s_sub_u32 s57, s57, s44")
    A("s_mul_i32 s44, s40, 114688")
    A("s_lshl_b32 s49, s41, 8")
    A("s_mov_b32 s18, 114688")
    A("s_mov_b32 s19, 0x20000")
    A("s_sub_u32 s22, 1605632, s49")
    A("s_mov_b32 s23, 0x20000")
    A("s_waitcnt lgkmcnt(0)")
    A("s_add_u32 s16, s4, s44")
    A("s_addc_u32 s17, s5, 0")
    A("s_add_u32 s20, s6, s49")
    A("s_addc_u32 s21, s7, 0")
    if stamps: A("s_memrealtime s[90:91]")
    emit_item(0)
    w2_setup()
    if B:
        A(f"s_mul_i32 s44, s43, {448*896}")
        A("s_lshl_b32 s52, s37, 11")
        A("s_add_u32 s44, s44, s52")
        A("s_add_u32 s52, s8, s44")
        A("s_addc_u32 s53, s9, 0")
    emit_item(1)
    pf = [(p, k) for p in range(NP) for k in range(32)] if B else []
    def pf_batch(nb):
        for _ in range(nb):
            if not pf: return
            p, k = pf.pop(0)
            if k == 0:
                A(f"s_mul_i32 s44, s47, {64*896}")
                A("s_add_u32 s54, s52, s44")
                A("s_addc_u32 s55, s53, 0")
                A("s_add_u32 s47, s47, 1")
                A("s_cmp_eq_u32 s47, 7")
                A("s_cselect_b32 s47, 0, s47")
            A(f"s_load_dword s56, s[54:55], {k*64}")
    cnts = [int(x) for x in cnt.split(",")] if cnt else None
    allops = [(n, op) for n in aux_items[2:] for op in item_ops(n)]
    if cnts: assert sum(cnts) == len(allops)
    for t in range(7):
        g.wait_vm(("p1", t))
        A("s_barrier")
        if stamps: A(f"s_memrealtime s[{66+2*t}:{67+2*t}]")
        if t >= T0: pf_batch(B)
        def linepf():
            A("s_add_u32 s44, s47, s43")
            A("s_cmp_ge_u32 s44, 7")
            A("s_cselect_b32 s52, 7, 0")
            A("s_sub_u32 s44, s44, s52")
            A("s_mul_i32 s52, s38, 7")
            A("s_add_u32 s44, s44, s52")
            A(f"s_mul_i32 s52, s44, {64*896}")
            A("v_mul_u32_u24 v23, 896, v1")
            if PFN < 4:
                A(f"s_cmp_ge_u32 s43, {PFN}")
                A("s_cselect_b32 s52, 0x7fffffff, s52")
            g.vmem("lpf", "buffer_load_dword v24, v23, s[24:27], s52 offen")
        if t == PFT and not PFP: linepf()
        if cnts:
            for _ in range(cnts[t]):
                n, op = allops.pop(0)
                if n >= 5: assert last_read[n - 5] < first_grp[t], (n, t)
                if n == 8 and w8: g.wait_vm(("w2", 0))
                emit_op(op)
            if t < 6: assert not any(n <= t + 1 for n, _ in allops)
            if t == PFT and PFP: linepf()
        else:
          for n in sch[t]:
            if n >= 5:
                old = n - 5
                assert last_read[old] < first_grp[t], (n, t)
            emit_item(n)
    g.wait_vm(("w2", npre - 1))
    if stamps: A(f"s_memrealtime s[80:81]")
    A("s_barrier")
    pf_batch(len(pf))
    if stamps:
        A("s_waitcnt lgkmcnt(0)")
        for u in range(9, NST-1): A(f"s_memrealtime s[{64+2*u}:{65+2*u}]")
        A("s_barrier")
        A("s_branch L_dump")
    g.label("L_end")
    A("s_endpgm")
    g.vm = []
    if helpers:
        g.C("================= spare CUs: L2 prefetch of w2 =================")
        g.label("L_helper")
        A("s_sub_u32 s38, s37, 28")
        A(f"s_mul_i32 s38, s38, {448*896}")
        A(f"s_mul_i32 s39, s3, {56*128}")
        A("s_add_u32 s38, s38, s39")
        A("v_min_u32 v4, 55, v1")
        A("v_lshlrev_b32 v4, 7, v4")
        A(f"s_add_u32 s47, s36, {HO}")
        mod7("s47")
        A("s_mov_b32 s26, 1605632")
        A("s_mov_b32 s27, 0x20000")
        A("s_waitcnt lgkmcnt(0)")
        A("s_mov_b32 s24, s8")
        A("s_mov_b32 s25, s9")
        if hx:
            A("s_mov_b32 s16, s4")
            A("s_mov_b32 s17, s5")
            A("s_mov_b32 s18, 1835008")
            A("s_mov_b32 s19, 0x20000")
            A("v_and_b32 v7, 7, v1")
            A("v_mul_u32_u24 v7, 896, v7")
            A("v_lshrrev_b32 v8, 3, v1")
            A("v_min_u32 v8, 2, v8")
            if hx == 1:
                A("v_lshl_add_u32 v7, v8, 8, v7")
                A("s_bfe_u32 s50, s36, 0x10001")
                A("s_add_u32 s50, s50, 1")
                A("s_lshl_b32 s50, s50, 7")
            else:
                A("v_mul_u32_u24 v8, v8, v8")
                A("v_lshl_add_u32 v7, v8, 7, v7")
                A("s_movk_i32 s50, 256")
            A("s_lshl_b32 s49, s36, 2")
            A("s_add_u32 s49, s49, s37")
            A("s_sub_u32 s49, s49, 28")
            A("s_lshl_b32 s49, s49, 3")
            A("s_add_u32 s49, s49, s3")
            A(f"s_mul_i32 s49, s49, {8*896}")
            A("s_add_u32 s49, s49, s50")
            A("buffer_load_dword v6, v7, s[16:19], s49 offen")
        for u in range(HP):
            A(f"s_mul_i32 s49, s47, {64*896}")
            A("s_add_u32 s49, s49, s38")
            if u == 0:
                for k in range(ramp):
                    A(f"s_cmp_lg_u32 s3, {k}")
                    A(f"s_cbranch_scc1 L_hr{k}")
                    A("buffer_load_dword v6, v4, s[24:27], s49 offen")
                    A("s_waitcnt vmcnt(0)")
                    g.label(f"L_hr{k}")
                    A("s_barrier")
            A("buffer_load_dword v6, v4, s[24:27], s49 offen")
            if hser: A("s_waitcnt vmcnt(0)")
            A("s_add_u32 s47, s47, 1")
            A("s_cmp_eq_u32 s47, 7")
            A("s_cselect_b32 s47, 0, s47")
            if stamps: A(f"s_memrealtime s[{66+2*u}:{67+2*u}]")
        if hh:
            A("v_mov_b32 v36, 0")
            A("global_load_dword v32, v36, s[12:13] sc1")
            A("s_sub_u32 s38, s37, 28")
            A("s_mov_b32 s47, s36")
            mod7("s47")
            A(f"s_mov_b32 s48, 0x{tabs[0]:x}")
            for r in range(1, 4):
                A(f"s_cmp_eq_u32 s38, {r}")
                A(f"s_cselect_b32 s48, 0x{tabs[r]:x}, s48")
            A("s_mul_i32 s44, s47, 0x1111111")
            A("s_add_u32 s48, s48, s44")
            A("s_add_u32 s44, s48, 0x1111111")
            A("s_and_b32 s44, s44, 0x8888888")
            A("s_lshr_b32 s44, s44, 3")
            A("s_mul_i32 s44, s44, 7")
            A("s_sub_u32 s48, s48, s44")
            A("s_and_b32 s43, s3, 3")
            A("s_and_b32 s44, s3, 4")
            A("s_lshr_b32 s48, s48, s44")
            A("s_lshr_b32 s45, s3, 2")
            A("s_lshl_b32 s42, s36, 2")
            A("s_add_u32 s42, s42, s38")
            A("s_mul_i32 s56, s42, 112")
            A("s_mul_i32 s57, s43, 28")
            A("s_add_u32 s56, s56, s57")
            A("s_lshl_b32 s56, s56, 11")
            A("s_lshl_b32 s57, s42, 2")
            A("s_add_u32 s57, s57, s43")
            A("s_lshl_b32 s57, s57, 7")
            A(f"s_add_u32 s57, s57, {FLAG_OFF}")
            A("s_add_u32 s6, s14, s57")
            A("s_addc_u32 s7, s15, 0")
            A("s_mov_b32 s28, s14")
            A("s_mov_b32 s29, s15")
            A(f"s_mov_b32 s30, {FLAG_OFF}")
            A("s_mov_b32 s31, 0x20000")
            A("v_lshlrev_b32 v4, 7, v1")
            A("s_waitcnt vmcnt(0)")
            A("v_readfirstlane_b32 s60, v32")
            A("s_mov_b32 s46, 0")
            A("s_nop 2")
            A("s_cmp_eq_u32 s60, 0")
            A("s_cbranch_scc1 L_hh_done")
            g.label("L_hh_next")
            A("s_and_b32 s49, s48, 7")
            A("s_lshl_b32 s50, s49, 2")
            g.label("L_hh_poll")
            A("s_load_dword s51, s[6:7], s50 glc")
            A("s_add_u32 s46, s46, 1")
            A("s_cmp_ge_u32 s46, 64")
            A("s_waitcnt lgkmcnt(0)")
            A("s_cbranch_scc1 L_hh_done")
            A("s_cmp_lg_u32 s51, s60")
            A("s_cbranch_scc1 L_hh_poll")
            A("s_lshl_b32 s49, s49, 13")
            A("s_add_u32 s49, s49, s56")
            A("buffer_load_dword v6, v4, s[28:31], s49 offen sc1")
            A("s_lshr_b32 s48, s48, 8")
            A("s_add_u32 s45, s45, 2")
            A(f"s_cmp_lt_u32 s45, {hh}")
            A("s_cbranch_scc1 L_hh_next")
            g.label("L_hh_done")
        if stamps:
            A("s_waitcnt vmcnt(0)")
            for u in range(HP, NST-1): A(f"s_memrealtime s[{66+2*u}:{67+2*u}]")
            A("s_branch L_dump")
        A("s_endpgm")

    g.C("================= waves 0..3: compute =================")
    g.label("L_compute")
    A("s_memrealtime s[60:61]")
    if prio: A(f"s_setprio {prio}")
    A("s_waitcnt lgkmcnt(0)")
    stamp("karg")
    A("v_mov_b32 v36, 0")
    A("s_or_b32 s44, s2, s43")
    A("s_cmp_lg_u32 s44, 0")
    A("s_cbranch_scc1 L_noepoch")
    A("s_or_b32 s60, s60, 1")
    A("s_atomic_swap s60, s[12:13], 0")
    g.label("L_noepoch")
    w2_setup()
    A("s_lshl_b32 s42, s36, 2")
    A("s_add_u32 s42, s42, s38")
    A("s_mov_b32 s28, s14")
    A("s_mov_b32 s29, s15")
    A(f"s_mov_b32 s30, {FLAG_OFF}")
    A("s_mov_b32 s31, 0x20000")
    A("s_mov_b32 s32, s10")
    A("s_mov_b32 s33, s11")
    A("s_mov_b32 s34, 1835008")
    A("s_mov_b32 s35, 0x20000")
    A("v_and_b32 v2, 31, v1")
    A("v_lshrrev_b32 v3, 5, v1")
    A("v_bfe_u32 v4, v1, 1, 3")
    A("v_xor_b32 v4, v4, v3")
    A("v_lshlrev_b32 v4, 4, v4")
    A("v_lshl_add_u32 v4, v2, 7, v4")
    A("s_lshr_b32 s52, s43, 1")
    A("s_and_b32 s53, s43, 1")
    A("s_lshl_b32 s44, s52, 13")
    A("v_add_u32 v22, s44, v4")
    for s in range(1, 4):
        A(f"v_xor_b32 v{22+s}, {s<<5}, v22")
    A("v_bfe_u32 v5, v1, 2, 2")
    A("v_lshl_add_u32 v6, v3, 3, v5")
    A("v_lshlrev_b32 v6, 8, v6")
    A("v_and_b32 v7, 3, v1")
    A("v_lshlrev_b32 v7, 3, v7")
    A("v_bfe_u32 v8, v1, 4, 1")
    A("v_lshl_add_u32 v7, v8, 5, v7")
    A("s_lshl_b32 s44, s53, 1")
    A("v_xor_b32 v9, s44, v5")
    A("v_lshl_add_u32 v9, v9, 6, v7")
    A("v_add_u32 v26, v9, v6")
    A("v_add_u32 v26, 16384, v26")
    A("v_xor_b32 v27, 64, v26")
    A("v_lshl_add_u32 v6, v3, 2, v5")
    A("v_lshlrev_b32 v6, 7, v6")
    A("v_lshrrev_b32 v9, 1, v5")
    A("v_xor_b32 v9, s52, v9")
    A("v_lshl_add_u32 v9, v9, 6, v7")
    A("v_add3_u32 v28, v9, v6, s51")
    A("v_xor_b32 v29, 64, v28")
    A("v_add_u32 v40, 0x10000, v28")
    A("v_add_u32 v41, 0x10000, v29")
    A("v_add_u32 v42, 0x20000, v28")
    A("v_add_u32 v43, 0x20000, v29")
    A("v_lshlrev_b32 v30, 4, v1")
    A("s_lshl_b32 s44, s53, 10")
    A("v_add_u32 v44, s44, v30")
    A("v_xor_b32 v45, 0x400, v44")
    A("s_lshl_b32 s44, s40, 1")
    A("s_add_u32 s44, s44, s52")
    A("s_mul_i32 s54, s44, 112")
    A("s_lshl_b32 s55, s41, 1")
    A("s_add_u32 s55, s55, s53")
    A("s_lshl_b32 s56, s55, 2")
    A("s_add_u32 s54, s54, s56")
    A("s_lshl_b32 s54, s54, 11")
    A("s_add_u32 s98, s54, 4096")
    A("s_mul_i32 s56, s55, 37")
    A("s_lshr_b32 s56, s56, 8")
    A("s_mul_i32 s57, s56, 7")
    A("s_sub_u32 s57, s55, s57")
    A("s_lshl_b32 s44, s44, 2")
    A("s_add_u32 s44, s44, s56")
    A("s_lshl_b32 s44, s44, 7")
    A("s_lshl_b32 s57, s57, 2")
    A("s_add_u32 s55, s44, s57")
    A(f"s_add_u32 s55, s55, {FLAG_OFF}")
    A("s_add_u32 s4, s14, s55")
    A("s_addc_u32 s5, s15, 0")
    A("s_mul_i32 s56, s42, 112")
    A("s_mul_i32 s57, s43, 28")
    A("s_add_u32 s56, s56, s57")
    A("s_lshl_b32 s56, s56, 11")
    A("s_lshl_b32 s57, s42, 2")
    A("s_add_u32 s57, s57, s43")
    A("s_lshl_b32 s57, s57, 7")
    A(f"s_add_u32 s57, s57, {FLAG_OFF}")
    A("s_add_u32 s6, s14, s57")
    A("s_addc_u32 s7, s15, 0")
    A("s_lshl_b32 s44, s42, 6")
    A("s_lshl_b32 s58, s53, 5")
    A("s_add_u32 s44, s44, s58")
    A("s_mul_i32 s44, s44, 896")
    A("s_lshl_b32 s58, s39, 7")
    A("s_add_u32 s44, s44, s58")
    A("s_lshl_b32 s58, s52, 6")
    A("s_add_u32 s99, s44, s58")
    A("v_mul_u32_u24 v38, 896, v2")
    A("v_lshl_add_u32 v38, v3, 4, v38")
    A("v_add_u32 v10, s51, v30")
    A("v_add_u32 v11, 0x10000, v10")
    A("v_xor_b32 v12, 0x2000, v10")
    A("v_xor_b32 v13, 0x4000, v11")
    A("v_xor_b32 v14, 0x6000, v11")
    A("s_waitcnt lgkmcnt(0)")

    ACC = 48
    def acc(i, j):
        b = ACC + (i*2+j)*16
        return f"v[{b}:{b+15}]"
    FB = 112; PK = 160; SB = 192
    basex = [0]*4; basew = [0]*2
    def rebase(reg, cur, want):
        if cur != want:
            A(f"v_add_u32 v{reg}, 0x{(want - cur) & 0xffffffff:x}, v{reg}")
        return want
    synced = set()
    def chunk_sync(t):
        if g.lg:
            A("s_waitcnt lgkmcnt(0)"); g.lg = []
        A("s_barrier")
        synced.add(t)
        if t in (0, 3, 6): stamp(f"c{t}")
    def plan(n):
        t, s_, i = groups[n]
        slot = t % 5
        want = (slot // 2) * 65536
        so = slot*32768 - want
        b0 = FB + (n % 2)*24
        rd = []
        def W(ss, ii, reg):
            basew[ii] = rebase(26+ii, basew[ii], want)
            for jj in range(2):
                rd.append((("f", n, reg), f"ds_read_b64_tr_b16 v[{reg+2*jj}:{reg+2*jj+1}], v{26+ii} offset:{so + ss*4096 + jj*1024}"))
        def X(ss, jj, reg):
            basex[ss] = rebase(22+ss, basex[ss], want)
            rd.append((("f", n, reg), f"ds_read_b128 v[{reg}:{reg+3}], v{22+ss} offset:{so + jj*4096}"))
        if i is None:
            W(s_, 0, b0); X(s_, 0, b0+4); X(s_, 1, b0+8); W(s_, 1, b0+12)
            mf = [(0, 0, b0, b0+4, b0+4), (0, 1, b0, b0+8, b0+8), (1, 1, b0+12, b0+8, b0+12), (1, 0, b0+12, b0+4, b0+12)]
        else:
            W(s_, i, b0); X(s_, 0, b0+4); X(s_, 1, b0+8); W(s_+1, i, b0+12); X(s_+1, 0, b0+16); X(s_+1, 1, b0+20)
            mf = [(i, 0, b0, b0+4, b0+4), (i, 1, b0, b0+8, b0+8), (i, 0, b0+12, b0+16, b0+16), (i, 1, b0+12, b0+20, b0+20)]
        return rd, mf
    def epi_ops(i):
        out = []
        for j in range(2):
            for half in range(2):
                src = ACC + (i*2+j)*16 + half*8
                dst = PK + ((i*2+j)*2+half)*4
                for e in range(4):
                    out.append(("v", f"v_cvt_pk_bf16_f32 v{dst+e}, v{src+2*e}, v{src+2*e+1}"))
                for e in range(4):
                    out.append(("v", f"v_pk_max_i16 v{dst+e}, v{dst+e}, 0"))
                off = (2*i+half)*2048 + j*1024
                sreg = "s54" if off < 4096 else "s98"
                o = off % 4096
                out.append(("m", f"buffer_store_dwordx4 v[{dst}:{dst+3}], v30, s[28:31], {sreg} offen" + (f" offset:{o}" if o else "") + " sc1"))
        return out
    def emit_epi(op):
        if op[0] == "v": A(op[1])
        else: g.vmem("hst", op[1])
    g.C("---- phase 1: h tile ----")
    last_i0 = max(n for n, (t, s_, i) in enumerate(groups) if i in (None, 0))
    epi0 = []
    started = set()
    chunk_sync(0)
    rd, mf = plan(0)
    for tag, ins in rd: g.ds(tag, ins)
    for n in range(NGR):
        rdn = []; mfn = None
        if n + 1 < NGR:
            tn = groups[n+1][0]
            if tn not in synced: chunk_sync(tn)
            rdn, mfn = plan(n + 1)
        if n == 8:
            g.vmem("epoch", "global_load_dword v32, v36, s[12:13] sc1")
        if n == last_i0 + 2 and last_i0 < NGR - 1:
            epi0 = epi_ops(0)
        for k, (i, j, a_, b_, wt) in enumerate(mf):
            g.wait_lg(("f", n, wt))
            if k == 0:
                for _ in range(3):
                    if rdn: tag, ins = rdn.pop(0); g.ds(tag, ins)
            c = acc(i, j) if (i, j) in started else "0"
            started.add((i, j))
            A(f"v_mfma_f32_32x32x16_bf16 {acc(i,j)}, v[{a_}:{a_+3}], v[{b_}:{b_+3}], {c}")
            if k <= 1:
                for _ in range(3):
                    if rdn: tag, ins = rdn.pop(0); g.ds(tag, ins)
            for _ in range(5 if k >= 1 else 2):
                if epi0: emit_epi(epi0.pop(0))
        assert not rdn
        mf = mfn
    stamp("p1end")
    npad = len(epi0)
    while epi0: emit_epi(epi0.pop(0))
    if last_i0 == NGR - 1:
        A("s_nop 8")
        for op in epi_ops(0): emit_epi(op)
    elif last_i0 + 2 >= NGR:
        A("s_nop 7")
        for op in epi_ops(0): emit_epi(op)
    else:
        A(f"s_nop {max(0, 10 - npad)}")
    for op in epi_ops(1): emit_epi(op)
    stamp("hst_iss")
    g.C("---- hand-off: rest of w2 -> LDS / registers, publish flag, poll flags ----")
    A("s_barrier")
    next_item = 7 + npre
    emit_item(next_item); next_item += 1
    def w2addr(u, i):
        slot = SLOT2[u]
        return [28, 40, 42][slot // 2] + i, (slot % 2)*32768
    stashed = set()
    def stash(u):
        if u in stashed: return
        stashed.add(u)
        g.wait_vm(("w2", u))
        for s in range(4):
            for i in range(2):
                reg, so = w2addr(u, i)
                for jj in range(2):
                    a = SB + (u*4+s)*8 + i*4 + jj*2
                    g.ds(("stash", u), f"ds_read_b64_tr_b16 v[{a}:{a+1}], v{reg} offset:{so + s*2048 + jj*1024}")
    for u in range(min(npre, 2)): stash(u)
    g.wait_vm("epoch")
    A("v_cmp_ne_u32 vcc, 0, v32")
    A("s_cbranch_vccnz L_epoch_ok")
    A("s_mov_b32 s44, 0")
    g.label("L_epoch_spin")
    A("global_load_dword v32, v36, s[12:13] sc1")
    A("s_waitcnt vmcnt(0)")
    A("s_add_u32 s44, s44, 1")
    A("s_cmp_ge_u32 s44, 0x40000")
    A("s_cbranch_scc1 L_epoch_ok")
    A("v_cmp_eq_u32 vcc, 0, v32")
    A("s_cbranch_vccnz L_epoch_spin")
    g.label("L_epoch_ok")
    A("v_readfirstlane_b32 s60, v32")
    A("v_readfirstlane_b32 s61, v32")
    A("s_nop 4")
    g.wait_vm("hst")
    stamp("hst_done")
    A("s_atomic_swap s60, s[4:5], 0")
    while next_item <= PP:
        if next_item == 10: stash(0)
        if next_item == 11: stash(1)
        if next_item >= 12: g.wait_lg(("stash", next_item - 12))
        if next_item == PP:
            A("s_load_dwordx8 s[16:23], s[6:7], 0 glc")
        emit_item(next_item); next_item += 1
    assert PP >= 11
    rest = [op for n in range(next_item, 14) for op in item_ops(n)]
    stamp("w2iss")
    A("s_mov_b32 s44, 0")
    A("s_branch L_poll_chk")
    g.label("L_poll")
    A("s_load_dwordx8 s[16:23], s[6:7], 0 glc")
    A("s_add_u32 s44, s44, 1")
    A("s_cmp_ge_u32 s44, 0x80000")
    A("s_cbranch_scc1 L_flags_to")
    g.label("L_poll_chk")
    A("s_waitcnt lgkmcnt(0)")
    g.lg = []
    A("s_cmp_lg_u64 s[16:17], s[60:61]")
    A("s_cbranch_scc1 L_poll")
    A("s_cmp_lg_u64 s[18:19], s[60:61]")
    A("s_cbranch_scc1 L_poll")
    A("s_cmp_lg_u64 s[20:21], s[60:61]")
    A("s_cbranch_scc1 L_poll")
    A("s_cmp_lg_u32 s22, s60")
    A("s_cbranch_scc1 L_poll")
    g.label("L_flags_to")
    A("s_waitcnt lgkmcnt(0)")
    stamp("flags")
    g.C("---- phase 2: out tile ----")
    HB = 112; HN = 6
    WB = 160; WN = 4
    assert HD < HN
    def hload(step):
        u, s = divmod(step, 4)
        if s == 0:
            A(f"s_bfe_u32 s58, s48, 0x{(3<<16)|(4*u):x}")
            A("s_lshl_b32 s58, s58, 13")
            A("s_add_u32 s58, s58, s56")
            A("s_add_u32 s59, s58, 4096")
        res = []
        for j in range(2):
            b = HB + (step % HN)*8 + j*4
            off = s*2048
            sreg = "s58" if off < 4096 else "s59"
            o = off % 4096
            res.append((("h", step, j), f"buffer_load_dwordx4 v[{b}:{b+3}], v{44+j}, s[28:31], {sreg} offen" + (f" offset:{o}" if o else "") + " sc1"))
        return res
    def w2reads(step):
        u, s = divmod(step, 4)
        if u < 2: return
        if s == 0: g.wait_vm(("w2", u))
        for i in range(2):
            reg, so = w2addr(u, i)
            for jj in range(2):
                b = WB + (step % WN)*8 + i*4 + jj*2
                g.ds(("wf", step), f"ds_read_b64_tr_b16 v[{b}:{b+1}], v{reg} offset:{so + s*2048 + jj*1024}")
    for st in range(HD):
        for tag, ins in hload(st): g.vmem(tag, ins)
        if st == HF - 1:
            while rest: emit_op(rest.pop(0))
    WD = 2
    def mf2(st, i, j):
        c = "0" if st == 0 else acc(i, j)
        hb = HB + (st % HN)*8 + j*4
        b = (SB + st*8 if st < 8 else WB + (st % WN)*8) + i*4
        A(f"v_mfma_f32_32x32x16_bf16 {acc(i,j)}, v[{b}:{b+3}], v[{hb}:{hb+3}], {c}")
    def redw(q, p):
        b = ACC + q*16 + p*4
        A(f"ds_write_b128 v{10 + q//2}, v[{b}:{b+3}] offset:{(q%2)*32768 + p*1024}")
    for st in range(26):
        w2reads(st + WD)
        g.wait_vm(("h", st, 0))
        if st == 0: stamp("h0")
        g.wait_lg(("wf", st))
        lds = hload(st + HD) if st + HD < 28 else []
        for k, (i, j) in enumerate([(0, 0), (1, 0), (1, 1), (0, 1)]):
            if j == 1: g.wait_vm(("h", st, 1))
            mf2(st, i, j)
            if k % 2 == 0 and lds:
                tag, ins = lds.pop(0)
                g.vmem(tag, ins)
            if k % 2 == 1 and rest: emit_op(rest.pop(0))
    assert not rest
    g.wait_lg(("wf", 27))
    g.wait_vm(("h", 26, 0)); mf2(26, 1, 0)
    g.wait_vm(("h", 26, 1)); mf2(26, 1, 1); mf2(26, 0, 1)
    g.wait_vm(("h", 27, 0)); mf2(27, 1, 0)
    g.wait_vm(("h", 27, 1)); mf2(27, 1, 1); mf2(27, 0, 1)
    mf2(26, 0, 0)
    stamp("p2end")
    A("s_nop 8")
    for p in range(4): redw(2, p)
    mf2(27, 0, 0)
    for p in range(4): redw(3, p)
    for p in range(4): redw(1, p)
    A("s_waitcnt lgkmcnt(0)")
    A("s_barrier")
    g.lg = []
    RB = 192
    for p in range(4):
        for q in range(1, 4):
            b = RB + (q-1)*16 + p*4
            g.ds(("red", p), f"ds_read_b128 v[{b}:{b+3}], v{11+q} offset:{(q%2)*32768 + p*1024}")
    for p in range(4):
        g.wait_lg(("red", p))
        for r in range(4*p, 4*p+4):
            A(f"v_add_f32 v{RB+r}, v{RB+r}, v{RB+16+r}")
            A(f"v_add_f32 v{ACC+r}, v{ACC+r}, v{RB+32+r}")
        for r in range(4*p, 4*p+4):
            A(f"v_add_f32 v{ACC+r}, v{ACC+r}, v{RB+r}")
        A(f"v_cvt_pk_bf16_f32 v{240+2*p}, v{ACC+4*p}, v{ACC+4*p+1}")
        A(f"v_cvt_pk_bf16_f32 v{241+2*p}, v{ACC+4*p+2}, v{ACC+4*p+3}")
        if p % 2 == 1:
            b = 240 + 2*(p-1)
            A("s_nop 1")
            A(f"v_permlane32_swap_b32 v{b}, v{b+2}")
            A(f"v_permlane32_swap_b32 v{b+1}, v{b+3}")
            A(f"buffer_store_dwordx4 v[{b}:{b+3}], v38, s[32:35], s99 offen" + (" offset:32" if p == 3 else ""))
    if probe is not None:
        stamp("st_iss")
        A("s_waitcnt vmcnt(0)")
        stamp("st_done")
        A("s_waitcnt lgkmcnt(0)")
        A("s_add_u32 s96, s96, 2000")
        g.label("L_dly")
        A("s_memrealtime s[100:101]")
        A("s_waitcnt lgkmcnt(0)")
        A("s_sub_u32 s100, s100, s96")
        A("s_cmp_lt_i32 s100, 0")
        A("s_cbranch_scc1 L_dly")
    if stamps:
        stamp("st_iss")
        A("s_waitcnt vmcnt(0)")
        stamp("st_done")
        g.label("L_dump")
        A("s_memrealtime s[94:95]")
        A("s_waitcnt lgkmcnt(0)")
        A("s_lshl_b32 s44, s2, 3")
        A("s_add_u32 s44, s44, s3")
        A("s_lshl_b32 s44, s44, 8")
        A(f"s_add_u32 s44, s44, 0x{STAMP_OFF:x}")
        A("v_mov_b32 v2, s44")
        A("s_mov_b64 exec, 1")
        regs = [62] + [64+2*i for i in range(NST)] + [94]
        for i, r in enumerate(regs):
            A(f"v_mov_b32 v4, s{r}")
            A(f"v_mov_b32 v5, s{r+1}")
            A(f"global_store_dwordx2 v2, v[4:5], s[14:15] offset:{8*i}")
            A("s_waitcnt vmcnt(0)")
    A("s_endpgm")
    g.label("L_code_end")
    DOC = """;
"""
    hdr = HEADER_COMMENTS + f"; @launch grid=({GRID},1,1) block=(512,1,1) lds=163840\n" + DOC
    hdr += f'''.amdgcn_target "amdgcn-amd-amdhsa--gfx950"
.text
.globl {KNAME}
.p2align 8
.type {KNAME},@function
{KNAME}:
'''
    ftr = f'''
.section .rodata,"a"
.p2align 6
.amdhsa_kernel {KNAME}
  .amdhsa_next_free_vgpr 256
  .amdhsa_next_free_sgpr 102
  .amdhsa_accum_offset 256
  .amdhsa_group_segment_fixed_size 0
  .amdhsa_kernarg_size 48
  .amdhsa_user_sgpr_count 2
  .amdhsa_user_sgpr_kernarg_segment_ptr 1
  .amdhsa_system_sgpr_workgroup_id_x 1
.end_amdhsa_kernel
'''
    return hdr + "\n".join(g.L) + ftr, names

if __name__ == "__main__":
    ap = argparse.ArgumentParser()
    ap.add_argument("-o", default="k7.s")
    ap.add_argument("--stamps", action="store_true")
    ap.add_argument("--probe", type=int, default=None)
    ap.add_argument("--rot1", default="m3")
    ap.add_argument("--order1", default="0,1,2,3,4a,5a,6a,4b,5b,6b")
    ap.add_argument("--sched", default="2,3,45,67,,,")
    for k, d in (("HD", 5), ("NP", 0), ("B", 0), ("T0", 1), ("prio", 1), ("aprio", 0), ("helpers", 0), ("ramp", 1), ("HP", 7), ("xo", 1), ("HO", 0), ("hser", 0), ("tabm", 1), ("hh", 0), ("w8", 0), ("hx", 0), ("sw1", 0), ("cph", 0), ("PFT", -1), ("PFN", 3), ("PFP", 1), ("PP", 13), ("HF", 0)):
        ap.add_argument("--" + k, type=int, default=d)
    ap.add_argument("--cnt", default="")
    a = ap.parse_args()
    kw = vars(a).copy(); o = kw.pop("o")
    s, n = gen(**kw)
    open(o, "w").write(s)
    print("written", o, "names", ",".join(n), "lines", s.count("\n"))
```
